```python
import torch

def _softmax(x, axis=-1):
    return torch.softmax(x, dim=axis)
def _gelu(x):
    return torch.nn.functional.gelu(x, approximate="tanh")
def _silu(x):
    return torch.nn.functional.silu(x)
def _sigmoid(x):
    return torch.sigmoid(x)
def _layernorm(x, axis=-1, eps=1e-5):
    m = x.mean(dim=axis, keepdim=True)
    v = x.var(dim=axis, keepdim=True, unbiased=False)
    return (x - m) / torch.sqrt(v + eps)
def _scatter_add(tgt, idx, src, axis=0):
    return tgt.clone().index_add_(axis, idx, src)
def _segment_sum(src, seg, n):
    out = torch.zeros((n,) + src.shape[1:], dtype=src.dtype)
    return out.index_add_(0, seg, src)
def _pad(x, pw):
    flat = tuple(v for pair in reversed(pw) for v in pair)
    return torch.nn.functional.pad(x, flat)

kernel_name = 'concat_heads__gqa_block_cached__gqa_block_cached__decode'

def setup_inputs():

    _w = (lambda a: (lambda t: t.to(torch.bfloat16) if t.is_floating_point() else t)(torch.as_tensor(a)))
    def _A_setup():
        B, Sq, D = 1, 1, 512
        Hq, Hkv, Sk, Dh = 32, 32, 4096, 128
        assert Hq % Hkv == 0, (Hq, Hkv)
        return {
            "x": _w((lambda *s: torch.randn(*s, dtype=torch.bfloat16) * 0.8)(B, Sq, D)),
            "k_cache": _w((lambda *s: torch.randn(*s, dtype=torch.bfloat16) * 1.6)(B, Hkv, Sk, Dh)),
            "v_cache": _w((lambda *s: torch.randn(*s, dtype=torch.bfloat16) * 0.2)(B, Hkv, Sk, Dh)),
            "wq": _w((lambda *s: torch.randn(*s, dtype=torch.bfloat16) * 1.6)(D, Hq * Dh) * (D ** -0.5)),
            "wo": _w((lambda *s: torch.randn(*s, dtype=torch.bfloat16) * 0.2)(Hq * Dh, D) * ((Hq * Dh) ** -0.5)),
        }
    _A_in = _A_setup()

    def _B_setup():
        B, Sq, D = 1, 1, 512
        Hq, Hkv, Sk, Dh = 32, 32, 4096, 128
        assert Hq % Hkv == 0, (Hq, Hkv)
        return {
            "x": _w((lambda *s: torch.randn(*s, dtype=torch.bfloat16) * 0.8)(B, Sq, D)),
            "k_cache": _w((lambda *s: torch.randn(*s, dtype=torch.bfloat16) * 1.6)(B, Hkv, Sk, Dh)),
            "v_cache": _w((lambda *s: torch.randn(*s, dtype=torch.bfloat16) * 0.2)(B, Hkv, Sk, Dh)),
            "wq": _w((lambda *s: torch.randn(*s, dtype=torch.bfloat16) * 1.6)(D, Hq * Dh) * (D ** -0.5)),
            "wo": _w((lambda *s: torch.randn(*s, dtype=torch.bfloat16) * 0.2)(Hq * Dh, D) * ((Hq * Dh) ** -0.5)),
        }
    _B_in = _B_setup()

    return {
        "A_x": _A_in["x"],
        "A_k_cache": _A_in["k_cache"],
        "A_v_cache": _A_in["v_cache"],
        "A_wq": _A_in["wq"],
        "A_wo": _A_in["wo"],
        "B_x": _B_in["x"],
        "B_k_cache": _B_in["k_cache"],
        "B_v_cache": _B_in["v_cache"],
        "B_wq": _B_in["wq"],
        "B_wo": _B_in["wo"],
    }

def reference(A_x, A_k_cache, A_v_cache, A_wq, A_wo, B_x, B_k_cache, B_v_cache, B_wq, B_wo):
    def _A_ref(x, k_cache, v_cache, wq, wo):
        B, Sq, D = x.shape
        Hq, Dh = 32, 128
        Hkv = k_cache.shape[1]
        rep = Hq // Hkv
        q = (lambda x, *d: x.permute(*d))((x @ wq).reshape(B, Sq, Hq, Dh), 0, 2, 1, 3)
        k = (lambda x, n, axis: torch.repeat_interleave(x, n, dim=axis))(k_cache, rep, axis=1)
        v = (lambda x, n, axis: torch.repeat_interleave(x, n, dim=axis))(v_cache, rep, axis=1)
        scores = torch.einsum("bhqd,bhkd->bhqk", q, k) * (Dh ** -0.5)
        p = _softmax(scores, axis=-1)
        o = torch.einsum("bhqk,bhkd->bhqd", p, v)
        return (lambda x, *d: x.permute(*d))(o, 0, 2, 1, 3).reshape(B, Sq, Hq * Dh) @ wo

    def _B_ref(x, k_cache, v_cache, wq, wo):
        B, Sq, D = x.shape
        Hq, Dh = 32, 128
        Hkv = k_cache.shape[1]
        rep = Hq // Hkv
        q = (lambda x, *d: x.permute(*d))((x @ wq).reshape(B, Sq, Hq, Dh), 0, 2, 1, 3)
        k = (lambda x, n, axis: torch.repeat_interleave(x, n, dim=axis))(k_cache, rep, axis=1)
        v = (lambda x, n, axis: torch.repeat_interleave(x, n, dim=axis))(v_cache, rep, axis=1)
        scores = torch.einsum("bhqd,bhkd->bhqk", q, k) * (Dh ** -0.5)
        p = _softmax(scores, axis=-1)
        o = torch.einsum("bhqk,bhkd->bhqd", p, v)
        return (lambda x, *d: x.permute(*d))(o, 0, 2, 1, 3).reshape(B, Sq, Hq * Dh) @ wo

    a = _A_ref(A_x, A_k_cache, A_v_cache, A_wq, A_wo)
    b = _B_ref(B_x, B_k_cache, B_v_cache, B_wq, B_wo)
    return torch.concatenate([a, b], axis=-1)
```

```python
import sys

NAME = "concat_heads__gqa_block_cached__gqa_block_cached__decode"
REF = f"cdna_kernels/{NAME}.s.ref"

DEF = dict(
    knt="nt", vnt="nt", wqnt="", wont="",
    order="q0,c,k0,k1,q1,q2,q3,k2,k3,k4,k5,k6,k7",
    rot=1,
    diag=0,
    cntgrp=5,
    trgrp=4,
    wostart=0,
    wopg=4,
)

L_WO = 0
L_QP = 131072
L_QB = 135168
L_MX = 137216
L_LS = 137248
L_OB = 137344
L_RD = 139648
L_END = 140672
WS_ML = 524288
WS_DIAG = 1 << 20


class G:
    def __init__(self, o):
        self.o = o
        self.l = []
        self.vm = []

    def e(self, s):
        self.l.append("    " + s)

    def lab(self, s):
        self.l.append(s + ":")

    def c(self, s):
        self.l.append("    ; " + s)

    def vmem(self, s, tag):
        self.e(s)
        self.vm.append(tag)

    def wait(self, tag, extra=""):
        idx = max(i for i, t in enumerate(self.vm) if t == tag)
        n = sum(1 for t in self.vm[idx+1:] if t != "?")
        assert len(self.vm) - 1 - idx <= 63, (tag, n)
        self.e(f"s_waitcnt vmcnt({n}) {extra}".rstrip())

    def nop(self, n):
        self.e(f"s_nop {n-1}")

    def stamp(self, k):
        if self.o["diag"]:
            self.e(f"s_memrealtime s[{70+2*k}:{71+2*k}]")


def gen(**kw):
    o = dict(DEF)
    o.update(kw)
    g = G(o)
    e = g.e
    KNT, VNT, WQNT, WONT = o["knt"], o["vnt"], o["wqnt"], o["wont"]

    g.stamp(0)
    e("s_cmp_ge_u32 s2, 0x100")
    e("s_cbranch_scc1 L_end")
    e("s_bfe_u32 s6, s2, 0x10005")
    e("s_mul_i32 s3, s6, 40")
    e("s_load_dwordx2 s[8:9], s[0:1], s3")
    e("s_add_u32 s4, s3, 24")
    e("s_load_dwordx2 s[20:21], s[0:1], s4")
    e("s_add_u32 s4, s3, 8")
    e("s_load_dwordx2 s[12:13], s[0:1], s4")
    e("s_add_u32 s4, s3, 16")
    e("s_load_dwordx2 s[16:17], s[0:1], s4")
    e("s_add_u32 s4, s3, 32")
    e("s_load_dwordx2 s[24:25], s[0:1], s4")
    e("s_load_dwordx2 s[28:29], s[0:1], 80")
    e("s_load_dwordx2 s[32:33], s[0:1], 88")
    e("s_load_dwordx2 s[36:37], s[0:1], 96")
    e("v_lshrrev_b32 v6, 6, v0")
    e("s_and_b32 s5, s2, 31")
    e("s_lshr_b32 s4, s2, 6")
    e("v_readfirstlane_b32 s7, v6")
    e("v_and_b32 v0, 63, v0")
    for r, sz in ((10, 1024), (14, 33554432), (18, 33554432), (22, 4194304), (26, 4194304),
                  (30, 2048), (34, 256), (38, 4194304)):
        e(f"s_mov_b32 s{r}, {sz}")
        e(f"s_mov_b32 s{r+1}, 0x20000")
    e("v_and_b32 v6, 15, v0")
    e("v_lshrrev_b32 v7, 4, v0")
    e("v_lshlrev_b32 v1, 8, v6")
    e("v_lshl_add_u32 v1, v7, 4, v1")
    e("v_lshlrev_b32 v2, 10, v7")
    e("v_lshl_add_u32 v2, v6, 4, v2")
    e("v_lshlrev_b32 v3, 17, v7")
    e("v_lshl_add_u32 v3, v6, 4, v3")
    e("v_lshlrev_b32 v5, 5, v7")
    e("s_lshl_b32 s40, s5, 20")
    e("s_lshl_b32 s3, s4, 18")
    e("s_add_u32 s40, s40, s3")
    e("s_lshl_b32 s3, s7, 15")
    e("s_add_u32 s40, s40, s3")
    e("s_lshl_b32 s41, s7, 19")
    e("s_lshl_b32 s3, s5, 8")
    e("s_add_u32 s41, s41, s3")
    e("s_lshl_b32 s42, s7, 7")
    for q in range(4):
        if o["rot"]:
            e(f"s_add_u32 s3, s4, {q}")
            e(f"s_and_b32 s{44+q}, s3, 3")
        else:
            e(f"s_mov_b32 s{44+q}, {q}")
    for q in range(4):
        e(f"s_lshl_b32 s3, s{44+q}, 3")
        e(f"s_add_u32 s{48+q}, s42, s3")
        e(f"s_lshl_b32 s3, s{44+q}, 15")
        e(f"s_add_u32 s{52+q}, s41, s3")
    e("s_waitcnt lgkmcnt(0)")
    g.stamp(1)

    def ld_x():
        for q in range(4):
            g.vmem(f"buffer_load_dwordx2 v[{32+2*q}:{33+2*q}], v5, s[8:11], s{48+q} offen", "x")

    def ld_wq(q):
        for u in range(4):
            t = 4 * q + u
            if u:
                e(f"s_add_u32 s{52+q}, s{52+q}, 0x2000")
            g.vmem(f"buffer_load_dwordx4 v[{64+4*t}:{67+4*t}], v3, s[20:23], s{52+q} offen {WQNT}", f"wq{t}")

    def ld_k(i):
        e(f"s_add_u32 s43, s40, {i*4096}")
        for kk in range(4):
            r = 128 + 16 * i + 4 * kk
            g.vmem(f"buffer_load_dwordx4 v[{r}:{r+3}], v1, s[12:15], s43 offen offset:{kk*64} {KNT}", f"k{i}")

    def clears():
        e("s_mov_b64 exec, s[60:61]")
        g.vmem("buffer_store_dwordx4 v[12:15], v62, s[36:39], s58 offen sc0 sc1", "clr")
        e("s_mov_b64 exec, -1")
        e("s_cmp_lg_u32 s7, 0")
        e("s_cbranch_scc1 L_noclr")
        e("s_mov_b64 exec, 1")
        e("buffer_store_dwordx2 v[12:13], off, s[36:39], s59 sc0 sc1")
        e("s_mov_b64 exec, -1")
        g.lab("L_noclr")
        g.vm.append("?")

    def pre_clears():
        e("s_lshl_b32 s56, s5, 2")
        e("s_add_u32 s56, s56, s4")
        e("s_lshl_b32 s58, s6, 18")
        e("s_lshl_b32 s3, s7, 15")
        e("s_add_u32 s58, s58, s3")
        e("s_lshl_b32 s3, s56, 7")
        e("s_add_u32 s58, s58, s3")
        e("s_lshl_b32 s59, s6, 7")
        e("s_add_u32 s59, s59, s56")
        e("s_lshl_b32 s59, s59, 3")
        e(f"s_add_u32 s59, s59, {WS_ML}")
        e("s_mov_b32 s60, 0x11111111")
        e("s_mov_b32 s61, 0x11111111")
        e("v_lshrrev_b32 v63, 5, v0")
        e("v_lshlrev_b32 v63, 14, v63")
        e("v_and_b32 v62, 31, v0")
        e("v_lshl_add_u32 v62, v62, 2, v63")
        for r in range(12, 16):
            e(f"v_mov_b32 v{r}, -1")

    order = o["order"]
    ld_x()
    pre_clears()
    for tok in order.split(","):
        if tok[0] == "q": ld_wq(int(tok[1]))
        elif tok[0] == "k": ld_k(int(tok[1]))
        elif tok[0] == "c": clears()
    assert g.vm.index("clr") < g.vm.index("wq15")
    waitb = waitc = g.wait

    g.stamp(2)
    e("v_and_b32 v16, 1, v6")
    e("v_lshlrev_b32 v16, 4, v16")
    e("s_mov_b32 s3, 0xffff")
    e("v_lshlrev_b32 v16, v16, s3")
    e("v_lshrrev_b32 v17, 1, v6")
    for w in range(4):
        e(f"v_cmp_eq_u32 vcc, {w}, v17")
        g.nop(2)
        e(f"v_cndmask_b32 v{8+w}, 0, v16, vcc")
    e("v_lshrrev_b32 v16, 3, v0")
    e("v_and_b32 v17, 7, v0")
    e("v_lshlrev_b32 v4, 10, v16")
    e("v_lshl_add_u32 v4, v17, 4, v4")
    e("s_lshl_b32 s62, s5, 17")
    e("s_lshl_b32 s3, s7, 7")
    e("s_add_u32 s62, s62, s3")
    e("s_lshl_b32 s63, s7, 14")
    e("s_mov_b32 s64, 0x01000100")
    e("s_mov_b32 s65, 0x03020302")
    e("s_lshl_b32 s3, s7, 9")
    e(f"s_add_u32 s3, s3, {L_QP}")
    e("v_lshlrev_b32 v60, 7, v7")
    e("v_lshl_add_u32 v60, v6, 2, v60")
    e("v_add_u32 v60, s3, v60")
    e(f"v_lshlrev_b32 v61, 3, v0")
    e(f"v_add_u32 v61, {L_QP}, v61")
    e("s_lshl_b32 s3, s7, 8")
    e(f"s_add_u32 s3, s3, {L_QB}")
    e("v_lshl_add_u32 v59, v0, 2, s3")
    e("v_lshl_add_u32 v58, v7, 4, s3")
    e("s_mov_b32 s66, 0x00ff00ff")
    e("s_mov_b32 s67, 0x00ff00ff")
    waitb("x")
    e("v_mov_b32 v5, v62")
    for t in range(16):
        e(f"v_perm_b32 v{40+t}, v{32+(t>>1)}, v{32+(t>>1)}, s{64+(t&1)}")
    for t in range(16):
        b = 16 + 4 * (t & 3)
        for w in range(4):
            e(f"v_and_b32 v{b+w}, v{40+t}, v{8+w}")
        waitb(f"wq{t}")
        g.nop(1)
        cc = "0" if t == 0 else "v[12:15]"
        e(f"v_mfma_f32_16x16x32_bf16 v[12:15], v[{64+4*t}:{67+4*t}], v[{b}:{b+3}], {cc}")
    g.nop(8)
    e("s_mov_b64 exec, s[66:67]")
    for r in range(4):
        e(f"ds_write_b32 v60, v{12+r} offset:{r*32}")
    e("s_mov_b64 exec, -1")
    e("s_waitcnt lgkmcnt(0)")
    e("s_barrier")
    g.stamp(3)
    for w in range(8):
        e(f"ds_read_b64 v[{32+2*w}:{33+2*w}], v61 offset:{w*512}")
    e("s_lshl_b32 s57, s6, 7")
    e("s_cmp_lg_u32 s7, 0")
    e("s_cbranch_scc1 L_nocnt")
    e("v_mov_b32 v12, 1")
    e("s_mov_b64 exec, 1")
    e("buffer_atomic_add v12, off, s[32:35], s57 sc1")
    e("s_mov_b64 exec, -1")
    g.lab("L_nocnt")
    g.vm.append("?")
    e("s_lshr_b32 s3, s5, 4")
    e("s_or_b32 s56, s3, s4")
    e("s_or_b32 s48, s56, s7")
    for w in range(1, 8):
        e(f"s_waitcnt lgkmcnt({7-w})")
        e(f"v_add_f32 v32, v32, v{32+2*w}")
        e(f"v_add_f32 v33, v33, v{33+2*w}")
    e("v_cvt_pk_bf16_f32 v32, v32, v33")
    e("ds_write_b32 v59, v32")
    e("s_waitcnt lgkmcnt(0)")
    for kk in range(4):
        e(f"ds_read_b128 v[{16+4*kk}:{19+4*kk}], v58 offset:{kk*64}")
    e("s_waitcnt lgkmcnt(0)")

    wo_n = 0

    def ld_wo():
        nonlocal wo_n
        t = wo_n
        q, u = t >> 2, t & 3
        if u == 0:
            e(f"s_lshl_b32 s3, s{44+q}, 15")
            e("s_add_u32 s68, s62, s3")
            e(f"s_lshl_b32 s3, s{44+q}, 12")
            e("s_add_u32 s69, s63, s3")
        else:
            e("s_add_u32 s68, s68, 0x2000")
            e("s_add_u32 s69, s69, 0x400")
        e("s_mov_b32 m0, s69")
        g.nop(1)
        g.vmem(f"buffer_load_dwordx4 v4, s[24:27], s68 offen {WONT} lds", "wo")
        wo_n += 1

    for i in range(8):
        waitb(f"k{i}")
        for kk in range(4):
            r = 128 + 16 * i + 4 * kk
            cc = "0" if kk == 0 else f"v[{32+4*i}:{35+4*i}]"
            e(f"v_mfma_f32_16x16x32_bf16 v[{32+4*i}:{35+4*i}], v[{r}:{r+3}], v[{16+4*kk}:{19+4*kk}], {cc}")
        if i == o["cntgrp"]:
            e("s_cmp_lg_u32 s48, 0")
            e("s_cbranch_scc1 L_nocl")
            e("buffer_load_dword v3, off, s[32:35], s57 sc0 sc1")
            g.lab("L_nocl")
            g.vm.append("?")
        e(f"s_add_u32 s43, s40, {i*4096}")
        for rr in range(4):
            r = 128 + 16 * i + 4 * rr
            g.vmem(f"buffer_load_dwordx4 v[{r}:{r+3}], v2, s[16:19], s43 offen offset:{rr*256} {VNT}", f"v{i}")
        if i >= o["wostart"]:
            for _ in range(o["wopg"]):
                if wo_n < 16:
                    ld_wo()
    while wo_n < 16:
        ld_wo()
    g.stamp(4)
    g.nop(4)
    e("v_max3_f32 v12, v32, v33, v34")
    for k in range(35, 63, 2):
        e(f"v_max3_f32 v12, v12, v{k}, v{k+1}")
    e("v_max_f32 v12, v12, v63")
    e("v_mov_b32 v13, v12")
    g.nop(2)
    e("v_permlane16_swap_b32 v12, v13")
    e("v_max_f32 v12, v12, v13")
    e("v_mov_b32 v13, v12")
    g.nop(2)
    e("v_permlane32_swap_b32 v12, v13")
    e("v_max_f32 v12, v12, v13")
    e("s_lshl_b32 s3, s7, 2")
    e(f"s_add_u32 s3, s3, {L_MX}")
    e("v_mov_b32 v6, s3")
    e(f"v_mov_b32 v7, {L_MX}")
    e("ds_write_b32 v6, v12")
    e("s_waitcnt lgkmcnt(0)")
    e("s_barrier")
    e("ds_read_b128 v[16:19], v7")
    e("ds_read_b128 v[20:23], v7 offset:16")
    e("s_mov_b32 s64, 0x3e0293ee")
    e("s_waitcnt lgkmcnt(0)")
    e("v_max3_f32 v12, v16, v17, v18")
    e("v_max3_f32 v12, v12, v19, v20")
    e("v_max3_f32 v12, v12, v21, v22")
    e("v_max_f32 v12, v12, v23")
    e("v_mul_f32 v14, s64, v12")
    for k in range(32, 64):
        e(f"v_fma_f32 v{k}, v{k}, s64, -v14")
    for k in range(32, 64):
        e(f"v_exp_f32 v{k}, v{k}")
    e("v_add_f32 v12, v32, v33")
    e("v_add_f32 v13, v34, v35")
    for k in range(36, 64, 2):
        e(f"v_add_f32 v12, v12, v{k}")
        e(f"v_add_f32 v13, v13, v{k+1}")
    e("v_add_f32 v12, v12, v13")
    for k in range(32, 64):
        e(f"v_cvt_pk_bf16_f32 v{k}, v{k}, v{k}")
    e("v_mov_b32 v13, v12")
    g.nop(2)
    e("v_permlane16_swap_b32 v12, v13")
    e("v_add_f32 v12, v12, v13")
    e("v_mov_b32 v13, v12")
    g.nop(2)
    e("v_permlane32_swap_b32 v12, v13")
    e("v_add_f32 v12, v12, v13")
    e(f"ds_write_b32 v6, v12 offset:{L_LS-L_MX}")
    e("v_readfirstlane_b32 s65, v14")
    e("v_and_b32 v16, 15, v0")
    e("v_lshrrev_b32 v17, 4, v0")
    e("v_lshrrev_b32 v18, 2, v16")
    e("v_lshlrev_b32 v18, 10, v18")
    e("v_lshl_add_u32 v18, v17, 8, v18")
    e("v_and_b32 v19, 3, v0")
    e("v_lshl_add_u32 v18, v19, 3, v18")
    e("v_add_u32 v1, s63, v18")
    e("s_mul_i32 s3, s7, 288")
    e(f"s_add_u32 s3, s3, {L_OB}")
    e("v_lshlrev_b32 v18, 6, v17")
    e("v_lshl_add_u32 v18, v16, 3, v18")
    e("v_add_u32 v2, s3, v18")
    e("v_and_b32 v18, 7, v0")
    e("v_mul_u32_u24 v18, 288, v18")
    e("v_lshl_add_u32 v18, v17, 4, v18")
    e(f"v_add_u32 v4, {L_OB}, v18")
    g.stamp(5)

    for i in range(8):
        for rr in range(4):
            for w in range(4):
                e(f"v_and_b32 v{16+4*rr+w}, v{32+4*i+rr}, v{8+w}")
        waitc(f"v{i}")
        for rr in range(4):
            r = 128 + 16 * i + 4 * rr
            cc = "0" if (i == 0 and rr == 0) else "v[12:15]"
            e(f"v_mfma_f32_16x16x32_bf16 v[12:15], v[{r}:{r+3}], v[{16+4*rr}:{19+4*rr}], {cc}")
        if i == o["trgrp"]:
            waitc("wo")
            n = 0
            for blk in range(4):
                for kk in range(4):
                    for hf in range(2):
                        r = 64 + blk * 16 + kk * 4 + hf * 2
                        e(f"ds_read_b64_tr_b16 v[{r}:{r+1}], v1 offset:{kk*4096+hf*128+blk*32}")
                        n += 1
                        if n % 8 == 0:
                            e("s_waitcnt lgkmcnt(4)")
        if i == o["cntgrp"]:
            e("s_cmp_lg_u32 s48, 0")
            e("s_cbranch_scc1 L_cntok")
            e("s_mov_b32 s42, 0x40000")
            g.lab("L_cpoll")
            e("v_cmp_eq_u32 vcc, 0x80, v3")
            e("s_cbranch_vccnz L_cntok")
            e("buffer_load_dword v3, off, s[32:35], s57 sc0 sc1")
            e("s_sub_u32 s42, s42, 1")
            e("s_cmp_lg_u32 s42, 0")
            e("s_waitcnt vmcnt(0)")
            e("s_cbranch_scc1 L_cpoll")
            g.lab("L_cntok")
    g.stamp(6)
    g.nop(8)
    e("v_cvt_pk_bf16_f32 v12, v12, v13")
    e("v_cvt_pk_bf16_f32 v13, v14, v15")
    e("s_mov_b64 exec, s[66:67]")
    e("ds_write_b64 v2, v[12:13]")
    e("s_mov_b64 exec, -1")
    e("s_waitcnt lgkmcnt(0)")
    e("s_barrier")
    g.stamp(7)
    for kk in range(4):
        e(f"ds_read_b128 v[{16+4*kk}:{19+4*kk}], v4 offset:{kk*64}")
    e(f"ds_read_b128 v[48:51], v7 offset:{L_LS-L_MX}")
    e(f"ds_read_b128 v[52:55], v7 offset:{L_LS-L_MX+16}")
    for kk in range(4):
        e(f"s_waitcnt lgkmcnt({5-kk})")
        for blk in range(4):
            r = 64 + blk * 16 + kk * 4
            cc = "0" if kk == 0 else f"v[{32+4*blk}:{35+4*blk}]"
            e(f"v_mfma_f32_16x16x32_bf16 v[{32+4*blk}:{35+4*blk}], v[{16+4*kk}:{19+4*kk}], v[{r}:{r+3}], {cc}")
    e("s_waitcnt lgkmcnt(0)")
    e("v_add_f32 v48, v48, v49")
    e("v_add_f32 v50, v50, v51")
    e("v_add_f32 v52, v52, v53")
    e("v_add_f32 v54, v54, v55")
    e("v_add_f32 v48, v48, v50")
    e("v_add_f32 v52, v52, v54")
    e("v_mov_b32 v56, s65")
    e("v_add_f32 v57, v48, v52")
    for blk in range(4):
        r = 32 + 4 * blk
        e(f"v_add_f32 v{r}, v{r}, v{r+1}")
        e(f"v_add_f32 v{r+2}, v{r+2}, v{r+3}")
    for blk in range(4):
        r = 32 + 4 * blk
        e(f"v_add_f32 v{r}, v{r}, v{r+2}")
    e("v_min_u32 v56, -2, v56")
    e("v_min_u32 v57, -2, v57")
    e("v_permlane16_swap_b32 v32, v36")
    e("v_permlane16_swap_b32 v40, v44")
    e("v_add_f32 v32, v32, v36")
    e("v_add_f32 v40, v40, v44")
    g.nop(2)
    e("v_permlane32_swap_b32 v32, v40")
    e("v_min_u32 v32, -2, v32")
    g.nop(2)
    for k in range(1, 4):
        e(f"v_mov_b32_dpp v{32+k}, v32 quad_perm:[{k},{k},{k},{k}] row_mask:0xf bank_mask:0xf")
    e("s_mov_b64 exec, s[60:61]")
    g.vmem("buffer_store_dwordx4 v[32:35], v5, s[36:39], s58 offen sc0 sc1", "y")
    e("s_cmp_lg_u32 s7, 0")
    e("s_cbranch_scc1 L_noml")
    e("s_mov_b64 exec, 1")
    e("buffer_store_dwordx2 v[56:57], off, s[36:39], s59 sc0 sc1")
    g.lab("L_noml")
    e("s_mov_b64 exec, -1")
    g.stamp(8)
    e("s_cmp_lg_u32 s56, 0")
    e("s_cbranch_scc1 L_fin")

    e("s_lshl_b32 s40, s6, 18")
    e("s_lshl_b32 s3, s5, 14")
    e("s_add_u32 s40, s40, s3")
    e("s_lshl_b32 s3, s7, 11")
    e("s_add_u32 s40, s40, s3")
    e("s_lshl_b32 s41, s6, 10")
    e("s_lshl_b32 s3, s7, 7")
    e("s_add_u32 s41, s41, s3")
    e(f"s_add_u32 s41, s41, {WS_ML}")
    e("v_lshlrev_b32 v1, 4, v0")
    e("v_lshrrev_b32 v3, 3, v0")
    e("v_lshlrev_b32 v3, 3, v3")
    e("s_mov_b32 s42, 0x40000")
    g.lab("L_poll")
    e("buffer_load_dwordx4 v[16:19], v1, s[36:39], s40 offen sc0 sc1")
    e("buffer_load_dwordx4 v[20:23], v1, s[36:39], s40 offen offset:1024 sc0 sc1")
    e("buffer_load_dwordx2 v[24:25], v3, s[36:39], s41 offen sc0 sc1")
    e("buffer_load_dwordx2 v[26:27], v3, s[36:39], s41 offen offset:64 sc0 sc1")
    e("s_sub_u32 s42, s42, 1")
    e("s_waitcnt vmcnt(0)")
    e("v_max3_u32 v28, v16, v17, v18")
    e("v_max3_u32 v29, v19, v20, v21")
    e("v_max3_u32 v28, v28, v22, v23")
    e("v_max3_u32 v29, v29, v24, v25")
    e("v_max3_u32 v28, v28, v26, v27")
    e("v_max_u32 v28, v28, v29")
    e("v_cmp_eq_u32 vcc, -1, v28")
    e("s_cbranch_vccz L_got")
    e("s_cmp_gt_i32 s42, 0")
    e("s_cbranch_scc1 L_poll")
    g.lab("L_got")
    g.stamp(9)
    e("v_max_f32_dpp v28, v24, v24 row_ror:8 row_mask:0xf bank_mask:0xf")
    e("v_max_f32_dpp v30, v26, v26 row_ror:8 row_mask:0xf bank_mask:0xf")
    e("v_mov_b32 v29, v28")
    e("v_mov_b32 v31, v30")
    g.nop(1)
    e("v_permlane16_swap_b32 v28, v29")
    e("v_permlane16_swap_b32 v30, v31")
    e("v_max_f32 v28, v28, v29")
    e("v_max_f32 v30, v30, v31")
    e("v_sub_f32 v24, v24, v28")
    e("v_sub_f32 v26, v26, v30")
    e("v_exp_f32 v24, v24")
    e("v_exp_f32 v26, v26")
    g.nop(1)
    e("v_mul_f32 v25, v24, v25")
    e("v_mul_f32 v27, v26, v27")
    g.nop(1)
    e("v_add_f32_dpp v28, v25, v25 row_ror:8 row_mask:0xf bank_mask:0xf")
    e("v_add_f32_dpp v30, v27, v27 row_ror:8 row_mask:0xf bank_mask:0xf")
    e("v_mov_b32 v29, v28")
    e("v_mov_b32 v31, v30")
    g.nop(1)
    e("v_permlane16_swap_b32 v28, v29")
    e("v_permlane16_swap_b32 v30, v31")
    e("v_add_f32 v28, v28, v29")
    e("v_add_f32 v30, v30, v31")
    e("v_rcp_f32 v28, v28")
    e("v_rcp_f32 v30, v30")
    g.nop(1)
    e("v_mul_f32 v24, v24, v28")
    e("v_mul_f32 v26, v26, v30")
    for k in range(4):
        e(f"v_mul_f32 v{16+k}, v{16+k}, v24")
    for k in range(4):
        e(f"v_fma_f32 v{16+k}, v{20+k}, v26, v{16+k}")
    e("v_and_b32 v28, 7, v0")
    e("v_lshrrev_b32 v29, 4, v0")
    for k in range(4):
        e(f"v_add_f32_dpp v{16+k}, v{16+k}, v{16+k} row_ror:8 row_mask:0xf bank_mask:0xf")
    e("v_lshl_add_u32 v28, v28, 2, v29")
    e("s_lshl_b32 s3, s7, 2")
    e(f"s_add_u32 s3, s3, {L_RD}")
    e("v_permlane16_swap_b32 v16, v17")
    e("v_permlane16_swap_b32 v18, v19")
    e("v_add_f32 v16, v16, v17")
    e("v_add_f32 v18, v18, v19")
    e("v_lshl_add_u32 v28, v28, 5, s3")
    g.nop(1)
    e("v_permlane32_swap_b32 v16, v18")
    e("v_add_f32 v16, v16, v18")
    e("ds_write_b32 v28, v16")
    e("s_waitcnt lgkmcnt(0)")
    e("s_barrier")
    e("s_cmp_lg_u32 s7, 0")
    e("s_cbranch_scc1 L_fin")
    e("v_and_b32 v1, 31, v0")
    e("v_lshlrev_b32 v2, 5, v1")
    e(f"v_add_u32 v2, {L_RD}, v2")
    e("ds_read_b128 v[16:19], v2")
    e("ds_read_b128 v[20:23], v2 offset:16")
    e("v_lshlrev_b32 v1, 1, v1")
    e("s_lshl_b32 s40, s6, 10")
    e("s_lshl_b32 s3, s5, 6")
    e("s_add_u32 s40, s40, s3")
    e("s_waitcnt lgkmcnt(0)")
    e("v_add_f32 v16, v16, v17")
    e("v_add_f32 v18, v18, v19")
    e("v_add_f32 v20, v20, v21")
    e("v_add_f32 v22, v22, v23")
    e("v_add_f32 v16, v16, v18")
    e("v_add_f32 v20, v20, v22")
    e("v_add_f32 v16, v16, v20")
    e("v_cvt_pk_bf16_f32 v16, v16, v16")
    e("buffer_store_short v16, v1, s[28:31], s40 offen")
    g.lab("L_fin")
    if o["diag"]:
        g.stamp(10)
        e("s_getreg_b32 s92, hwreg(HW_REG_XCC_ID)")
        e("s_getreg_b32 s93, hwreg(HW_REG_HW_ID)")
        e("s_waitcnt lgkmcnt(0)")
        e("s_lshl_b32 s3, s2, 3")
        e("s_add_u32 s3, s3, s7")
        e("s_lshl_b32 s3, s3, 7")
        e(f"s_add_u32 s3, s3, {WS_DIAG}")
        e("s_mov_b64 exec, 1")
        for k in range(12):
            e(f"v_mov_b32 v16, s{70+2*k}")
            e(f"v_mov_b32 v17, s{71+2*k}")
            e(f"buffer_store_dwordx2 v[16:17], off, s[36:39], s3 offset:{8*k}")
            e("s_waitcnt vmcnt(0)")
    g.lab("L_end")

    src = open(REF).read().split("\n")
    out = []
    i = 0
    while not src[i].startswith(NAME + "_kernel:"):
        ln = src[i]
        if ln.startswith("; @launch"):
            ln = f"; @launch grid=(256,1,1) block=(512,1,1) lds={L_END}"
        out.append(ln)
        i += 1
    out.append(src[i])
    out += g.l
    while not src[i].startswith("s_endpgm"):
        i += 1
    out += src[i:]
    return "\n".join(out)


if __name__ == "__main__":
    path = sys.argv[1]
    kw = {}
    for a in sys.argv[2:]:
        k, v = a.split("=")
        kw[k] = int(v) if v.lstrip("-").isdigit() else ("" if v == "_" else v.replace("+", " "))
    open(path, "w").write(gen(**kw))
```

```python
import sys

NAME = "concat_heads__gqa_block_cached__gqa_block_cached__decode"
REF = f"cdna_kernels/{NAME}.s.ref"

DEF = dict(
    knt="nt", vnt="nt", wqnt="", wont="",
    order="q0,c,q1,q2,q3,p0,k0,k1", post="k2,k3,k4,k5,k6,k7", prio0=3, vprio=-1, nobar=1,
    rot=1,
    diag=0,
    cntgrp=5,
    trgrp=4,
    wostart=0,
    wopg=4,
)

L_WO = 0
L_QP = 131072
L_QB = 135168
L_MX = 137216
L_LS = 137248
L_OB = 137344
L_RD = 139648
L_END = 140672
WS_ML = 524288
WS_DIAG = 1 << 20


class G:
    def __init__(self, o):
        self.o = o
        self.l = []
        self.vm = []

    def e(self, s):
        self.l.append("    " + s)

    def lab(self, s):
        self.l.append(s + ":")

    def c(self, s):
        self.l.append("    ; " + s)

    def vmem(self, s, tag):
        self.e(s)
        self.vm.append(tag)

    def wait(self, tag, extra=""):
        idx = max(i for i, t in enumerate(self.vm) if t == tag)
        n = sum(1 for t in self.vm[idx+1:] if t != "?")
        assert len(self.vm) - 1 - idx <= 63, (tag, n)
        self.e(f"s_waitcnt vmcnt({n}) {extra}".rstrip())

    def nop(self, n):
        self.e(f"s_nop {n-1}")

    def stamp(self, k):
        if self.o["diag"]:
            self.e(f"s_memrealtime s[{70+2*k}:{71+2*k}]")


def gen(**kw):
    o = dict(DEF)
    o.update(kw)
    g = G(o)
    e = g.e
    KNT, VNT, WQNT, WONT = o["knt"], o["vnt"], o["wqnt"], o["wont"]

    g.stamp(0)
    e("s_cmp_ge_u32 s2, 0x100")
    e("s_cbranch_scc1 L_end")
    if o["prio0"] >= 0: e(f"s_setprio {o['prio0']}")
    e("s_bfe_u32 s6, s2, 0x10005")
    e("s_mul_i32 s3, s6, 40")
    e("s_load_dwordx2 s[8:9], s[0:1], s3")
    e("s_add_u32 s4, s3, 24")
    e("s_load_dwordx2 s[20:21], s[0:1], s4")
    e("s_add_u32 s4, s3, 8")
    e("s_load_dwordx2 s[12:13], s[0:1], s4")
    e("s_add_u32 s4, s3, 16")
    e("s_load_dwordx2 s[16:17], s[0:1], s4")
    e("s_add_u32 s4, s3, 32")
    e("s_load_dwordx2 s[24:25], s[0:1], s4")
    e("s_load_dwordx2 s[28:29], s[0:1], 80")
    e("s_load_dwordx2 s[32:33], s[0:1], 88")
    e("s_load_dwordx2 s[36:37], s[0:1], 96")
    e("v_lshrrev_b32 v6, 6, v0")
    e("s_and_b32 s5, s2, 31")
    e("s_lshr_b32 s4, s2, 6")
    e("v_readfirstlane_b32 s7, v6")
    e("v_and_b32 v0, 63, v0")
    for r, sz in ((10, 1024), (14, 33554432), (18, 33554432), (22, 4194304), (26, 4194304),
                  (30, 2048), (34, 256), (38, 4194304)):
        e(f"s_mov_b32 s{r}, {sz}")
        e(f"s_mov_b32 s{r+1}, 0x20000")
    e("v_and_b32 v6, 15, v0")
    e("v_lshrrev_b32 v7, 4, v0")
    e("v_lshlrev_b32 v1, 8, v6")
    e("v_lshl_add_u32 v1, v7, 4, v1")
    e("v_lshlrev_b32 v2, 10, v7")
    e("v_lshl_add_u32 v2, v6, 4, v2")
    e("v_lshlrev_b32 v3, 17, v7")
    e("v_lshl_add_u32 v3, v6, 4, v3")
    e("v_lshlrev_b32 v5, 5, v7")
    e("s_lshl_b32 s40, s5, 20")
    e("s_lshl_b32 s3, s4, 18")
    e("s_add_u32 s40, s40, s3")
    e("s_lshl_b32 s3, s7, 15")
    e("s_add_u32 s40, s40, s3")
    e("s_lshl_b32 s41, s7, 19")
    e("s_lshl_b32 s3, s5, 8")
    e("s_add_u32 s41, s41, s3")
    e("s_lshl_b32 s42, s7, 7")
    for q in range(4):
        if o["rot"]:
            e(f"s_add_u32 s3, s4, {q}")
            e(f"s_and_b32 s{44+q}, s3, 3")
        else:
            e(f"s_mov_b32 s{44+q}, {q}")
    for q in range(4):
        e(f"s_lshl_b32 s3, s{44+q}, 3")
        e(f"s_add_u32 s{48+q}, s42, s3")
        e(f"s_lshl_b32 s3, s{44+q}, 15")
        e(f"s_add_u32 s{52+q}, s41, s3")
    e("s_waitcnt lgkmcnt(0)")
    g.stamp(1)

    def ld_x():
        for q in range(4):
            g.vmem(f"buffer_load_dwordx2 v[{32+2*q}:{33+2*q}], v5, s[8:11], s{48+q} offen", "x")

    def ld_wq(q):
        for u in range(4):
            t = 4 * q + u
            if u:
                e(f"s_add_u32 s{52+q}, s{52+q}, 0x2000")
            g.vmem(f"buffer_load_dwordx4 v[{64+4*t}:{67+4*t}], v3, s[20:23], s{52+q} offen {WQNT}", f"wq{t}")

    def ld_k(i):
        e(f"s_add_u32 s43, s40, {i*4096}")
        for kk in range(4):
            r = 128 + 16 * i + 4 * kk
            g.vmem(f"buffer_load_dwordx4 v[{r}:{r+3}], v1, s[12:15], s43 offen offset:{kk*64} {KNT}", f"k{i}")

    def clears():
        e("s_mov_b64 exec, s[60:61]")
        g.vmem("buffer_store_dwordx4 v[12:15], v62, s[36:39], s58 offen sc0 sc1", "clr")
        e("s_mov_b64 exec, -1")
        e("s_cmp_lg_u32 s7, 0")
        e("s_cbranch_scc1 L_noclr")
        e("s_mov_b64 exec, 1")
        e("buffer_store_dwordx2 v[12:13], off, s[36:39], s59 sc0 sc1")
        e("s_mov_b64 exec, -1")
        g.lab("L_noclr")
        g.vm.append("?")

    def pre_clears():
        e("s_lshl_b32 s56, s5, 2")
        e("s_add_u32 s56, s56, s4")
        e("s_lshl_b32 s58, s6, 18")
        e("s_lshl_b32 s3, s7, 15")
        e("s_add_u32 s58, s58, s3")
        e("s_lshl_b32 s3, s56, 7")
        e("s_add_u32 s58, s58, s3")
        e("s_lshl_b32 s59, s6, 7")
        e("s_add_u32 s59, s59, s56")
        e("s_lshl_b32 s59, s59, 3")
        e(f"s_add_u32 s59, s59, {WS_ML}")
        e("s_mov_b32 s60, 0x11111111")
        e("s_mov_b32 s61, 0x11111111")
        e("v_lshrrev_b32 v63, 5, v0")
        e("v_lshlrev_b32 v63, 14, v63")
        e("v_and_b32 v62, 31, v0")
        e("v_lshl_add_u32 v62, v62, 2, v63")
        for r in range(12, 16):
            e(f"v_mov_b32 v{r}, -1")

    order = o["order"]
    ld_x()
    pre_clears()
    for tok in order.split(","):
        if tok[0] == "q": ld_wq(int(tok[1]))
        elif tok[0] == "k": ld_k(int(tok[1]))
        elif tok[0] == "c": clears()
        elif tok[0] == "p": e(f"s_setprio {tok[1]}")
    assert g.vm.index("clr") < g.vm.index("wq15")
    waitb = waitc = g.wait

    g.stamp(2)
    e("v_and_b32 v16, 1, v6")
    e("v_lshlrev_b32 v16, 4, v16")
    e("s_mov_b32 s3, 0xffff")
    e("v_lshlrev_b32 v16, v16, s3")
    e("v_lshrrev_b32 v17, 1, v6")
    for w in range(4):
        e(f"v_cmp_eq_u32 vcc, {w}, v17")
        g.nop(2)
        e(f"v_cndmask_b32 v{8+w}, 0, v16, vcc")
    e("v_lshrrev_b32 v16, 3, v0")
    e("v_and_b32 v17, 7, v0")
    e("v_lshlrev_b32 v4, 10, v16")
    e("v_lshl_add_u32 v4, v17, 4, v4")
    e("s_lshl_b32 s62, s5, 17")
    e("s_lshl_b32 s3, s7, 7")
    e("s_add_u32 s62, s62, s3")
    e("s_lshl_b32 s63, s7, 14")
    e("s_mov_b32 s64, 0x01000100")
    e("s_mov_b32 s65, 0x03020302")
    e("s_lshl_b32 s3, s7, 9")
    e(f"s_add_u32 s3, s3, {L_QP}")
    e("v_lshlrev_b32 v60, 7, v7")
    e("v_lshl_add_u32 v60, v6, 2, v60")
    e("v_add_u32 v60, s3, v60")
    e(f"v_lshlrev_b32 v61, 3, v0")
    e(f"v_add_u32 v61, {L_QP}, v61")
    e("s_lshl_b32 s3, s7, 8")
    e(f"s_add_u32 s3, s3, {L_QB}")
    e("v_lshl_add_u32 v59, v0, 2, s3")
    e("v_lshl_add_u32 v58, v7, 4, s3")
    e("s_mov_b32 s66, 0x00ff00ff")
    e("s_mov_b32 s67, 0x00ff00ff")
    waitb("x")
    e("v_mov_b32 v5, v62")
    for t in range(16):
        e(f"v_perm_b32 v{40+t}, v{32+(t>>1)}, v{32+(t>>1)}, s{64+(t&1)}")
    for t in range(16):
        b = 16 + 4 * (t & 3)
        for w in range(4):
            e(f"v_and_b32 v{b+w}, v{40+t}, v{8+w}")
        waitb(f"wq{t}")
        g.nop(1)
        cc = "0" if t == 0 else "v[12:15]"
        e(f"v_mfma_f32_16x16x32_bf16 v[12:15], v[{64+4*t}:{67+4*t}], v[{b}:{b+3}], {cc}")
    g.nop(8)
    e("s_mov_b64 exec, s[66:67]")
    for r in range(4):
        e(f"ds_write_b32 v60, v{12+r} offset:{r*32}")
    e("s_mov_b64 exec, -1")
    e("s_waitcnt lgkmcnt(0)")
    e("s_barrier")
    g.stamp(3)
    for w in range(8):
        e(f"ds_read_b64 v[{32+2*w}:{33+2*w}], v61 offset:{w*512}")
    e("s_lshl_b32 s57, s6, 7")
    e("s_cmp_lg_u32 s7, 0")
    e("s_cbranch_scc1 L_nocnt")
    e("v_mov_b32 v12, 1")
    e("s_mov_b64 exec, 1")
    e("buffer_atomic_add v12, off, s[32:35], s57 sc1")
    e("s_mov_b64 exec, -1")
    g.lab("L_nocnt")
    g.vm.append("?")
    e("s_lshr_b32 s3, s5, 4")
    e("s_or_b32 s56, s3, s4")
    e("s_or_b32 s48, s56, s7")
    for w in range(1, 8):
        e(f"s_waitcnt lgkmcnt({7-w})")
        e(f"v_add_f32 v32, v32, v{32+2*w}")
        e(f"v_add_f32 v33, v33, v{33+2*w}")
    e("v_cvt_pk_bf16_f32 v32, v32, v33")
    e("ds_write_b32 v59, v32")
    e("s_waitcnt lgkmcnt(0)")
    for kk in range(4):
        e(f"ds_read_b128 v[{16+4*kk}:{19+4*kk}], v58 offset:{kk*64}")
    for tok in o["post"].split(","):
        if not tok: continue
        if tok[0] == "k": ld_k(int(tok[1]))
        elif tok[0] == "p": e(f"s_setprio {tok[1]}")
    e("s_waitcnt lgkmcnt(0)")

    wo_n = 0

    def ld_wo():
        nonlocal wo_n
        t = wo_n
        q, u = t >> 2, t & 3
        if u == 0:
            e(f"s_lshl_b32 s3, s{44+q}, 15")
            e("s_add_u32 s68, s62, s3")
            e(f"s_lshl_b32 s3, s{44+q}, 12")
            e("s_add_u32 s69, s63, s3")
        else:
            e("s_add_u32 s68, s68, 0x2000")
            e("s_add_u32 s69, s69, 0x400")
        e("s_mov_b32 m0, s69")
        g.nop(1)
        g.vmem(f"buffer_load_dwordx4 v4, s[24:27], s68 offen {WONT} lds", "wo")
        wo_n += 1

    for i in range(8):
        waitb(f"k{i}")
        for kk in range(4):
            r = 128 + 16 * i + 4 * kk
            cc = "0" if kk == 0 else f"v[{32+4*i}:{35+4*i}]"
            e(f"v_mfma_f32_16x16x32_bf16 v[{32+4*i}:{35+4*i}], v[{r}:{r+3}], v[{16+4*kk}:{19+4*kk}], {cc}")
        if i == o["cntgrp"]:
            e("s_cmp_lg_u32 s48, 0")
            e("s_cbranch_scc1 L_nocl")
            e("buffer_load_dword v3, off, s[32:35], s57 sc0 sc1")
            g.lab("L_nocl")
            g.vm.append("?")
        e(f"s_add_u32 s43, s40, {i*4096}")
        for rr in range(4):
            r = 128 + 16 * i + 4 * rr
            g.vmem(f"buffer_load_dwordx4 v[{r}:{r+3}], v2, s[16:19], s43 offen offset:{rr*256} {VNT}", f"v{i}")
        if i >= o["wostart"]:
            for _ in range(o["wopg"]):
                if wo_n < 16:
                    ld_wo()
    while wo_n < 16:
        ld_wo()
    g.stamp(4)
    g.nop(4)
    e("v_max3_f32 v12, v32, v33, v34")
    for k in range(35, 63, 2):
        e(f"v_max3_f32 v12, v12, v{k}, v{k+1}")
    e("v_max_f32 v12, v12, v63")
    e("v_mov_b32 v13, v12")
    g.nop(2)
    e("v_permlane16_swap_b32 v12, v13")
    e("v_max_f32 v12, v12, v13")
    e("v_mov_b32 v13, v12")
    g.nop(2)
    e("v_permlane32_swap_b32 v12, v13")
    e("v_max_f32 v12, v12, v13")
    e("s_lshl_b32 s3, s7, 2")
    e(f"s_add_u32 s3, s3, {L_MX}")
    e("v_mov_b32 v6, s3")
    e("v_and_b32 v7, 16, v0")
    e(f"v_add_u32 v7, {L_MX}, v7")
    e("s_mov_b32 s64, 0x3e0293ee")
    e("v_mul_f32 v14, s64, v12")
    e("ds_write_b32 v6, v14")
    for k in range(32, 64):
        e(f"v_fma_f32 v{k}, v{k}, s64, -v14")
    for k in range(32, 64):
        e(f"v_exp_f32 v{k}, v{k}")
    e("v_add_f32 v12, v32, v33")
    e("v_add_f32 v13, v34, v35")
    for k in range(36, 64, 2):
        e(f"v_add_f32 v12, v12, v{k}")
        e(f"v_add_f32 v13, v13, v{k+1}")
    e("v_add_f32 v12, v12, v13")
    for k in range(32, 64):
        e(f"v_cvt_pk_bf16_f32 v{k}, v{k}, v{k}")
    e("v_mov_b32 v13, v12")
    g.nop(2)
    e("v_permlane16_swap_b32 v12, v13")
    e("v_add_f32 v12, v12, v13")
    e("v_mov_b32 v13, v12")
    g.nop(2)
    e("v_permlane32_swap_b32 v12, v13")
    e("v_add_f32 v12, v12, v13")
    e(f"ds_write_b32 v6, v12 offset:{L_LS-L_MX}")
    e("v_and_b32 v16, 15, v0")
    e("v_lshrrev_b32 v17, 4, v0")
    e("v_lshrrev_b32 v18, 2, v16")
    e("v_lshlrev_b32 v18, 10, v18")
    e("v_lshl_add_u32 v18, v17, 8, v18")
    e("v_and_b32 v19, 3, v0")
    e("v_lshl_add_u32 v18, v19, 3, v18")
    e("v_add_u32 v1, s63, v18")
    e("s_mul_i32 s3, s7, 288")
    e(f"s_add_u32 s3, s3, {L_OB}")
    e("v_lshlrev_b32 v18, 6, v17")
    e("v_lshl_add_u32 v18, v16, 3, v18")
    e("v_add_u32 v2, s3, v18")
    e("v_and_b32 v18, 7, v0")
    e("v_mul_u32_u24 v18, 288, v18")
    e("v_lshl_add_u32 v18, v17, 4, v18")
    e(f"v_add_u32 v4, {L_OB}, v18")
    g.stamp(5)

    if o["vprio"] >= 0: e(f"s_setprio {o['vprio']}")
    for i in range(8):
        for rr in range(4):
            for w in range(4):
                e(f"v_and_b32 v{16+4*rr+w}, v{32+4*i+rr}, v{8+w}")
        waitc(f"v{i}")
        for rr in range(4):
            r = 128 + 16 * i + 4 * rr
            cc = "0" if (i == 0 and rr == 0) else "v[12:15]"
            e(f"v_mfma_f32_16x16x32_bf16 v[12:15], v[{r}:{r+3}], v[{16+4*rr}:{19+4*rr}], {cc}")
        if i == o["trgrp"]:
            waitc("wo")
            n = 0
            for blk in range(4):
                for kk in range(4):
                    for hf in range(2):
                        r = 64 + blk * 16 + kk * 4 + hf * 2
                        e(f"ds_read_b64_tr_b16 v[{r}:{r+1}], v1 offset:{kk*4096+hf*128+blk*32}")
                        n += 1
                        if n % 8 == 0:
                            e("s_waitcnt lgkmcnt(4)")
        if i == o["cntgrp"]:
            e("s_cmp_lg_u32 s48, 0")
            e("s_cbranch_scc1 L_cntok")
            e("s_mov_b32 s42, 0x40000")
            g.lab("L_cpoll")
            e("v_cmp_le_u32 vcc, 0x80, v3")
            e("s_cbranch_vccnz L_cntok")
            e("buffer_load_dword v3, off, s[32:35], s57 sc0 sc1")
            e("s_sub_u32 s42, s42, 1")
            e("s_cmp_lg_u32 s42, 0")
            e("s_waitcnt vmcnt(0)")
            e("s_cbranch_scc1 L_cpoll")
            g.lab("L_cntok")
    g.stamp(6)
    g.nop(8)
    e("v_cvt_pk_bf16_f32 v12, v12, v13")
    e("v_cvt_pk_bf16_f32 v13, v14, v15")
    e("s_mov_b64 exec, s[66:67]")
    e("ds_write_b64 v2, v[12:13]")
    e("s_mov_b64 exec, -1")
    e("s_waitcnt lgkmcnt(0)")
    e("s_barrier")
    g.stamp(7)
    e(f"ds_read_b128 v[48:51], v7")
    e(f"ds_read_b128 v[52:55], v7 offset:{L_LS-L_MX}")
    for kk in range(4):
        e(f"ds_read_b128 v[{16+4*kk}:{19+4*kk}], v4 offset:{kk*64}")
    for kk in range(4):
        e(f"s_waitcnt lgkmcnt({3-kk})")
        for blk in range(4):
            r = 64 + blk * 16 + kk * 4
            cc = "0" if kk == 0 else f"v[{32+4*blk}:{35+4*blk}]"
            e(f"v_mfma_f32_16x16x32_bf16 v[{32+4*blk}:{35+4*blk}], v[{16+4*kk}:{19+4*kk}], v[{r}:{r+3}], {cc}")
        if kk == 0:
            e("v_max3_f32 v56, v48, v49, v50")
            e("v_max_f32 v56, v56, v51")
            e("v_mov_b32 v57, v56")
        if kk == 1:
            e("v_permlane16_swap_b32 v56, v57")
            e("v_max_f32 v56, v56, v57")
            for k in range(4):
                e(f"v_sub_f32 v{48+k}, v{48+k}, v56")
        if kk == 2:
            for k in range(4):
                e(f"v_exp_f32 v{48+k}, v{48+k}")
    e("v_mul_f32 v57, v48, v52")
    for k in range(1, 4):
        e(f"v_fma_f32 v57, v{48+k}, v{52+k}, v57")
    e("v_mov_b32 v58, v57")
    for blk in range(4):
        r = 32 + 4 * blk
        e(f"v_mul_f32 v{r}, v{r}, v48")
        if blk == 1:
            e("v_permlane16_swap_b32 v57, v58")
            e("v_add_f32 v57, v57, v58")
    for k in range(1, 4):
        for blk in range(4):
            r = 32 + 4 * blk
            e(f"v_fma_f32 v{r}, v{r+k}, v{48+k}, v{r}")
    e("v_min_u32 v56, -2, v56")
    e("v_min_u32 v57, -2, v57")
    e("v_permlane16_swap_b32 v32, v36")
    e("v_permlane16_swap_b32 v40, v44")
    e("v_add_f32 v32, v32, v36")
    e("v_add_f32 v40, v40, v44")
    g.nop(2)
    e("v_permlane32_swap_b32 v32, v40")
    e("v_min_u32 v32, -2, v32")
    g.nop(2)
    for k in range(1, 4):
        e(f"v_mov_b32_dpp v{32+k}, v32 quad_perm:[{k},{k},{k},{k}] row_mask:0xf bank_mask:0xf")
    e("s_mov_b64 exec, s[60:61]")
    g.vmem("buffer_store_dwordx4 v[32:35], v5, s[36:39], s58 offen sc0 sc1", "y")
    e("s_cmp_lg_u32 s7, 0")
    e("s_cbranch_scc1 L_noml")
    e("s_mov_b64 exec, 1")
    e("buffer_store_dwordx2 v[56:57], off, s[36:39], s59 sc0 sc1")
    g.lab("L_noml")
    e("s_mov_b64 exec, -1")
    g.stamp(8)
    e("s_cmp_lg_u32 s56, 0")
    e("s_cbranch_scc1 L_fin")

    e("s_lshl_b32 s40, s6, 18")
    e("s_lshl_b32 s3, s5, 14")
    e("s_add_u32 s40, s40, s3")
    e("s_lshl_b32 s3, s7, 11")
    e("s_add_u32 s40, s40, s3")
    e("s_lshl_b32 s41, s6, 10")
    e("s_lshl_b32 s3, s7, 7")
    e("s_add_u32 s41, s41, s3")
    e(f"s_add_u32 s41, s41, {WS_ML}")
    e("v_lshlrev_b32 v1, 4, v0")
    e("v_lshrrev_b32 v3, 3, v0")
    e("v_lshlrev_b32 v3, 3, v3")
    e("s_mov_b32 s42, 0x40000")
    g.lab("L_poll")
    e("buffer_load_dwordx4 v[16:19], v1, s[36:39], s40 offen sc0 sc1")
    e("buffer_load_dwordx4 v[20:23], v1, s[36:39], s40 offen offset:1024 sc0 sc1")
    e("buffer_load_dwordx2 v[24:25], v3, s[36:39], s41 offen sc0 sc1")
    e("buffer_load_dwordx2 v[26:27], v3, s[36:39], s41 offen offset:64 sc0 sc1")
    e("s_sub_u32 s42, s42, 1")
    e("s_waitcnt vmcnt(0)")
    e("v_max3_u32 v28, v16, v17, v18")
    e("v_max3_u32 v29, v19, v20, v21")
    e("v_max3_u32 v28, v28, v22, v23")
    e("v_max3_u32 v29, v29, v24, v25")
    e("v_max3_u32 v28, v28, v26, v27")
    e("v_max_u32 v28, v28, v29")
    e("v_cmp_eq_u32 vcc, -1, v28")
    e("s_cbranch_vccz L_got")
    e("s_cmp_gt_i32 s42, 0")
    e("s_cbranch_scc1 L_poll")
    g.lab("L_got")
    g.stamp(9)
    e("v_max_f32_dpp v28, v24, v24 row_ror:8 row_mask:0xf bank_mask:0xf")
    e("v_max_f32_dpp v30, v26, v26 row_ror:8 row_mask:0xf bank_mask:0xf")
    e("v_mov_b32 v29, v28")
    e("v_mov_b32 v31, v30")
    g.nop(1)
    e("v_permlane16_swap_b32 v28, v29")
    e("v_permlane16_swap_b32 v30, v31")
    e("v_max_f32 v28, v28, v29")
    e("v_max_f32 v30, v30, v31")
    e("v_sub_f32 v24, v24, v28")
    e("v_sub_f32 v26, v26, v30")
    e("v_exp_f32 v24, v24")
    e("v_exp_f32 v26, v26")
    g.nop(1)
    e("v_mul_f32 v25, v24, v25")
    e("v_mul_f32 v27, v26, v27")
    g.nop(1)
    e("v_add_f32_dpp v28, v25, v25 row_ror:8 row_mask:0xf bank_mask:0xf")
    e("v_add_f32_dpp v30, v27, v27 row_ror:8 row_mask:0xf bank_mask:0xf")
    e("v_mov_b32 v29, v28")
    e("v_mov_b32 v31, v30")
    g.nop(1)
    e("v_permlane16_swap_b32 v28, v29")
    e("v_permlane16_swap_b32 v30, v31")
    e("v_add_f32 v28, v28, v29")
    e("v_add_f32 v30, v30, v31")
    e("v_rcp_f32 v28, v28")
    e("v_rcp_f32 v30, v30")
    g.nop(1)
    e("v_mul_f32 v24, v24, v28")
    e("v_mul_f32 v26, v26, v30")
    for k in range(4):
        e(f"v_mul_f32 v{16+k}, v{16+k}, v24")
    for k in range(4):
        e(f"v_fma_f32 v{16+k}, v{20+k}, v26, v{16+k}")
    e("v_and_b32 v28, 7, v0")
    e("v_lshrrev_b32 v29, 4, v0")
    for k in range(4):
        e(f"v_add_f32_dpp v{16+k}, v{16+k}, v{16+k} row_ror:8 row_mask:0xf bank_mask:0xf")
    e("v_lshl_add_u32 v28, v28, 2, v29")
    e("s_lshl_b32 s3, s7, 2")
    e(f"s_add_u32 s3, s3, {L_RD}")
    e("v_permlane16_swap_b32 v16, v17")
    e("v_permlane16_swap_b32 v18, v19")
    e("v_add_f32 v16, v16, v17")
    e("v_add_f32 v18, v18, v19")
    e("v_lshl_add_u32 v28, v28, 5, s3")
    g.nop(1)
    e("v_permlane32_swap_b32 v16, v18")
    e("v_add_f32 v16, v16, v18")
    e("ds_write_b32 v28, v16")
    e("s_waitcnt lgkmcnt(0)")
    e("s_barrier")
    e("s_cmp_lg_u32 s7, 0")
    e("s_cbranch_scc1 L_fin")
    e("v_and_b32 v1, 31, v0")
    e("v_lshlrev_b32 v2, 5, v1")
    e(f"v_add_u32 v2, {L_RD}, v2")
    e("ds_read_b128 v[16:19], v2")
    e("ds_read_b128 v[20:23], v2 offset:16")
    e("v_lshlrev_b32 v1, 1, v1")
    e("s_lshl_b32 s40, s6, 10")
    e("s_lshl_b32 s3, s5, 6")
    e("s_add_u32 s40, s40, s3")
    e("s_waitcnt lgkmcnt(0)")
    e("v_add_f32 v16, v16, v17")
    e("v_add_f32 v18, v18, v19")
    e("v_add_f32 v20, v20, v21")
    e("v_add_f32 v22, v22, v23")
    e("v_add_f32 v16, v16, v18")
    e("v_add_f32 v20, v20, v22")
    e("v_add_f32 v16, v16, v20")
    e("v_cvt_pk_bf16_f32 v16, v16, v16")
    e("buffer_store_short v16, v1, s[28:31], s40 offen")
    g.lab("L_fin")
    if o["diag"]:
        g.stamp(10)
        e("s_getreg_b32 s92, hwreg(HW_REG_XCC_ID)")
        e("s_getreg_b32 s93, hwreg(HW_REG_HW_ID)")
        e("s_waitcnt lgkmcnt(0)")
        e("s_lshl_b32 s3, s2, 3")
        e("s_add_u32 s3, s3, s7")
        e("s_lshl_b32 s3, s3, 7")
        e(f"s_add_u32 s3, s3, {WS_DIAG}")
        e("s_mov_b64 exec, 1")
        for k in range(12):
            e(f"v_mov_b32 v16, s{70+2*k}")
            e(f"v_mov_b32 v17, s{71+2*k}")
            e(f"buffer_store_dwordx2 v[16:17], off, s[36:39], s3 offset:{8*k}")
            e("s_waitcnt vmcnt(0)")
    g.lab("L_end")

    src = open(REF).read().split("\n")
    out = []
    i = 0
    while not src[i].startswith(NAME + "_kernel:"):
        ln = src[i]
        if ln.startswith("; @launch"):
            ln = f"; @launch grid=(256,1,1) block=(512,1,1) lds={L_END}"
        out.append(ln)
        i += 1
    out.append(src[i])
    out += g.l
    while not src[i].startswith("s_endpgm"):
        i += 1
    out += src[i:]
    return "\n".join(out)


if __name__ == "__main__":
    path = sys.argv[1]
    kw = {}
    for a in sys.argv[2:]:
        k, v = a.split("=")
        kw[k] = int(v) if v.lstrip("-").isdigit() else ("" if v == "_" else v.replace("+", " "))
    open(path, "w").write(gen(**kw))
```

```python
import sys

NAME = "concat_heads__gqa_block_cached__gqa_block_cached__decode"
REF = f"cdna_kernels/{NAME}.s.ref"

DEF = dict(
    knt="nt", vnt="nt", wqnt="", wont="",
    order="q0,c,q1,q2,q3,p0,k0,k1", post="k2,k3,k4,k5,k6,k7", amp=0, ampa=0, ampb=10, prio0=3, vprio=-1, nobar=1,
    rot=1,
    diag=0,
    cntgrp=5,
    trgrp=4,
    wostart=0,
    wopg=4,
)

L_WO = 0
L_QP = 131072
L_QB = 135168
L_MX = 137216
L_LS = 137248
L_OB = 137344
L_RD = 139648
L_END = 140672
WS_ML = 524288
WS_DIAG = 1 << 20


class G:
    def __init__(self, o):
        self.o = o
        self.l = []
        self.vm = []

    def e(self, s):
        self.l.append("    " + s)

    def lab(self, s):
        self.l.append(s + ":")

    def c(self, s):
        self.l.append("    ; " + s)

    def vmem(self, s, tag):
        self.e(s)
        self.vm.append(tag)

    def wait(self, tag, extra=""):
        idx = max(i for i, t in enumerate(self.vm) if t == tag)
        n = sum(1 for t in self.vm[idx+1:] if t != "?")
        assert len(self.vm) - 1 - idx <= 63, (tag, n)
        self.e(f"s_waitcnt vmcnt({n}) {extra}".rstrip())

    def nop(self, n):
        self.e(f"s_nop {n-1}")

    def stamp(self, k):
        if self.o["diag"]:
            self.e(f"s_memrealtime s[{70+2*k}:{71+2*k}]")


def gen(**kw):
    o = dict(DEF)
    o.update(kw)
    g = G(o)
    e = g.e
    KNT, VNT, WQNT, WONT = o["knt"], o["vnt"], o["wqnt"], o["wont"]

    g.stamp(0)
    e("s_cmp_ge_u32 s2, 0x100")
    e("s_cbranch_scc1 L_end")
    if o["prio0"] >= 0: e(f"s_setprio {o['prio0']}")
    e("s_bfe_u32 s6, s2, 0x10005")
    e("s_mul_i32 s3, s6, 40")
    e("s_load_dwordx2 s[8:9], s[0:1], s3")
    e("s_add_u32 s4, s3, 24")
    e("s_load_dwordx2 s[20:21], s[0:1], s4")
    e("s_add_u32 s4, s3, 8")
    e("s_load_dwordx2 s[12:13], s[0:1], s4")
    e("s_add_u32 s4, s3, 16")
    e("s_load_dwordx2 s[16:17], s[0:1], s4")
    e("s_add_u32 s4, s3, 32")
    e("s_load_dwordx2 s[24:25], s[0:1], s4")
    e("s_load_dwordx2 s[28:29], s[0:1], 80")
    e("s_load_dwordx2 s[32:33], s[0:1], 88")
    e("s_load_dwordx2 s[36:37], s[0:1], 96")
    e("v_lshrrev_b32 v6, 6, v0")
    e("s_and_b32 s5, s2, 31")
    e("s_lshr_b32 s4, s2, 6")
    e("v_readfirstlane_b32 s7, v6")
    e("v_and_b32 v0, 63, v0")
    for r, sz in ((10, 1024), (14, 33554432), (18, 33554432), (22, 4194304), (26, 4194304),
                  (30, 2048), (34, 256), (38, 4194304)):
        e(f"s_mov_b32 s{r}, {sz}")
        e(f"s_mov_b32 s{r+1}, 0x20000")
    e("v_and_b32 v6, 15, v0")
    e("v_lshrrev_b32 v7, 4, v0")
    e("v_lshlrev_b32 v1, 8, v6")
    e("v_lshl_add_u32 v1, v7, 4, v1")
    e("v_lshlrev_b32 v2, 10, v7")
    e("v_lshl_add_u32 v2, v6, 4, v2")
    e("v_lshlrev_b32 v3, 17, v7")
    e("v_lshl_add_u32 v3, v6, 4, v3")
    e("v_lshlrev_b32 v5, 5, v7")
    e("s_lshl_b32 s40, s5, 20")
    e("s_lshl_b32 s3, s4, 18")
    e("s_add_u32 s40, s40, s3")
    e("s_lshl_b32 s3, s7, 15")
    e("s_add_u32 s40, s40, s3")
    e("s_lshl_b32 s41, s7, 19")
    e("s_lshl_b32 s3, s5, 8")
    e("s_add_u32 s41, s41, s3")
    e("s_lshl_b32 s42, s7, 7")
    for q in range(4):
        if o["rot"]:
            e(f"s_add_u32 s3, s4, {q}")
            e(f"s_and_b32 s{44+q}, s3, 3")
        else:
            e(f"s_mov_b32 s{44+q}, {q}")
    for q in range(4):
        e(f"s_lshl_b32 s3, s{44+q}, 3")
        e(f"s_add_u32 s{48+q}, s42, s3")
        e(f"s_lshl_b32 s3, s{44+q}, 15")
        e(f"s_add_u32 s{52+q}, s41, s3")
    e("s_waitcnt lgkmcnt(0)")
    g.stamp(1)

    def ld_x():
        for q in range(4):
            g.vmem(f"buffer_load_dwordx2 v[{32+2*q}:{33+2*q}], v5, s[8:11], s{48+q} offen", "x")

    def ld_wq(q):
        for u in range(4):
            t = 4 * q + u
            if u:
                e(f"s_add_u32 s{52+q}, s{52+q}, 0x2000")
            g.vmem(f"buffer_load_dwordx4 v[{64+4*t}:{67+4*t}], v3, s[20:23], s{52+q} offen {WQNT}", f"wq{t}")

    def ld_k(i):
        e(f"s_add_u32 s43, s40, {i*4096}")
        for kk in range(4):
            r = 128 + 16 * i + 4 * kk
            g.vmem(f"buffer_load_dwordx4 v[{r}:{r+3}], v1, s[12:15], s43 offen offset:{kk*64} {KNT}", f"k{i}")

    def clears():
        e("s_mov_b64 exec, s[60:61]")
        g.vmem("buffer_store_dwordx4 v[12:15], v62, s[36:39], s58 offen sc0 sc1", "clr")
        e("s_mov_b64 exec, -1")
        e("s_cmp_lg_u32 s7, 0")
        e("s_cbranch_scc1 L_noclr")
        e("s_mov_b64 exec, 1")
        e("buffer_store_dwordx2 v[12:13], off, s[36:39], s59 sc0 sc1")
        e("s_mov_b64 exec, -1")
        g.lab("L_noclr")
        g.vm.append("?")

    def pre_clears():
        e("s_lshl_b32 s56, s5, 2")
        e("s_add_u32 s56, s56, s4")
        e("s_lshl_b32 s58, s6, 18")
        e("s_lshl_b32 s3, s7, 15")
        e("s_add_u32 s58, s58, s3")
        e("s_lshl_b32 s3, s56, 7")
        e("s_add_u32 s58, s58, s3")
        e("s_lshl_b32 s59, s6, 7")
        e("s_add_u32 s59, s59, s56")
        e("s_lshl_b32 s59, s59, 3")
        e(f"s_add_u32 s59, s59, {WS_ML}")
        e("s_mov_b32 s60, 0x11111111")
        e("s_mov_b32 s61, 0x11111111")
        e("v_lshrrev_b32 v63, 5, v0")
        e("v_lshlrev_b32 v63, 14, v63")
        e("v_and_b32 v62, 31, v0")
        e("v_lshl_add_u32 v62, v62, 2, v63")
        for r in range(12, 16):
            e(f"v_mov_b32 v{r}, -1")

    order = o["order"]
    ld_x()
    pre_clears()
    for tok in order.split(","):
        if tok[0] == "q": ld_wq(int(tok[1]))
        elif tok[0] == "k": ld_k(int(tok[1]))
        elif tok[0] == "c": clears()
        elif tok[0] == "p": e(f"s_setprio {tok[1]}")
    assert g.vm.index("clr") < g.vm.index("wq15")
    waitb = waitc = g.wait

    g.stamp(2)
    e("v_and_b32 v16, 1, v6")
    e("v_lshlrev_b32 v16, 4, v16")
    e("s_mov_b32 s3, 0xffff")
    e("v_lshlrev_b32 v16, v16, s3")
    e("v_lshrrev_b32 v17, 1, v6")
    for w in range(4):
        e(f"v_cmp_eq_u32 vcc, {w}, v17")
        g.nop(2)
        e(f"v_cndmask_b32 v{8+w}, 0, v16, vcc")
    e("v_lshrrev_b32 v16, 3, v0")
    e("v_and_b32 v17, 7, v0")
    e("v_lshlrev_b32 v4, 10, v16")
    e("v_lshl_add_u32 v4, v17, 4, v4")
    e("s_lshl_b32 s62, s5, 17")
    e("s_lshl_b32 s3, s7, 7")
    e("s_add_u32 s62, s62, s3")
    e("s_lshl_b32 s63, s7, 14")
    e("s_mov_b32 s64, 0x01000100")
    e("s_mov_b32 s65, 0x03020302")
    e("s_lshl_b32 s3, s7, 9")
    e(f"s_add_u32 s3, s3, {L_QP}")
    e("v_lshlrev_b32 v60, 7, v7")
    e("v_lshl_add_u32 v60, v6, 2, v60")
    e("v_add_u32 v60, s3, v60")
    e(f"v_lshlrev_b32 v61, 3, v0")
    e(f"v_add_u32 v61, {L_QP}, v61")
    e("s_lshl_b32 s3, s7, 8")
    e(f"s_add_u32 s3, s3, {L_QB}")
    e("v_lshl_add_u32 v59, v0, 2, s3")
    e("v_lshl_add_u32 v58, v7, 4, s3")
    e("s_mov_b32 s66, 0x00ff00ff")
    e("s_mov_b32 s67, 0x00ff00ff")
    waitb("x")
    e("v_mov_b32 v5, v62")
    for t in range(16):
        e(f"v_perm_b32 v{40+t}, v{32+(t>>1)}, v{32+(t>>1)}, s{64+(t&1)}")
    for t in range(16):
        b = 16 + 4 * (t & 3)
        for w in range(4):
            e(f"v_and_b32 v{b+w}, v{40+t}, v{8+w}")
        waitb(f"wq{t}")
        g.nop(1)
        cc = "0" if t == 0 else "v[12:15]"
        e(f"v_mfma_f32_16x16x32_bf16 v[12:15], v[{64+4*t}:{67+4*t}], v[{b}:{b+3}], {cc}")
    g.nop(8)
    e("s_mov_b64 exec, s[66:67]")
    for r in range(4):
        e(f"ds_write_b32 v60, v{12+r} offset:{r*32}")
    e("s_mov_b64 exec, -1")
    e("s_waitcnt lgkmcnt(0)")
    e("s_barrier")
    g.stamp(3)
    for w in range(8):
        e(f"ds_read_b64 v[{32+2*w}:{33+2*w}], v61 offset:{w*512}")
    e("s_lshl_b32 s57, s6, 7")
    e("s_cmp_lg_u32 s7, 0")
    e("s_cbranch_scc1 L_nocnt")
    e("v_mov_b32 v12, 1")
    e("s_mov_b64 exec, 1")
    e("buffer_atomic_add v12, off, s[32:35], s57 sc1")
    e("s_mov_b64 exec, -1")
    g.lab("L_nocnt")
    g.vm.append("?")
    e("s_lshr_b32 s3, s5, 4")
    e("s_or_b32 s56, s3, s4")
    e("s_or_b32 s48, s56, s7")
    for w in range(1, 8):
        e(f"s_waitcnt lgkmcnt({7-w})")
        e(f"v_add_f32 v32, v32, v{32+2*w}")
        e(f"v_add_f32 v33, v33, v{33+2*w}")
    e("v_cvt_pk_bf16_f32 v32, v32, v33")
    e("ds_write_b32 v59, v32")
    e("s_waitcnt lgkmcnt(0)")
    for kk in range(4):
        e(f"ds_read_b128 v[{16+4*kk}:{19+4*kk}], v58 offset:{kk*64}")
    for tok in o["post"].split(","):
        if not tok: continue
        if tok[0] == "k": ld_k(int(tok[1]))
        elif tok[0] == "p": e(f"s_setprio {tok[1]}")
    e("s_waitcnt lgkmcnt(0)")

    wo_n = 0

    def ld_wo():
        nonlocal wo_n
        t = wo_n
        q, u = t >> 2, t & 3
        if u == 0:
            e(f"s_lshl_b32 s3, s{44+q}, 15")
            e("s_add_u32 s68, s62, s3")
            e(f"s_lshl_b32 s3, s{44+q}, 12")
            e("s_add_u32 s69, s63, s3")
        else:
            e("s_add_u32 s68, s68, 0x2000")
            e("s_add_u32 s69, s69, 0x400")
        e("s_mov_b32 m0, s69")
        g.nop(1)
        g.vmem(f"buffer_load_dwordx4 v4, s[24:27], s68 offen {WONT} lds", "wo")
        wo_n += 1

    for i in range(8):
        waitb(f"k{i}")
        for kk in range(4):
            r = 128 + 16 * i + 4 * kk
            cc = "0" if kk == 0 else f"v[{32+4*i}:{35+4*i}]"
            e(f"v_mfma_f32_16x16x32_bf16 v[{32+4*i}:{35+4*i}], v[{r}:{r+3}], v[{16+4*kk}:{19+4*kk}], {cc}")
        if i == o["cntgrp"]:
            e("s_cmp_lg_u32 s48, 0")
            e("s_cbranch_scc1 L_nocl")
            e("buffer_load_dword v3, off, s[32:35], s57 sc0 sc1")
            g.lab("L_nocl")
            g.vm.append("?")
        e(f"s_add_u32 s43, s40, {i*4096}")
        for rr in range(4):
            r = 128 + 16 * i + 4 * rr
            g.vmem(f"buffer_load_dwordx4 v[{r}:{r+3}], v2, s[16:19], s43 offen offset:{rr*256} {VNT}", f"v{i}")
        if i >= o["wostart"]:
            for _ in range(o["wopg"]):
                if wo_n < 16:
                    ld_wo()
    while wo_n < 16:
        ld_wo()
    g.stamp(4)
    g.nop(4)
    e("v_max3_f32 v12, v32, v33, v34")
    for k in range(35, 63, 2):
        e(f"v_max3_f32 v12, v12, v{k}, v{k+1}")
    e("v_max_f32 v12, v12, v63")
    e("v_mov_b32 v13, v12")
    g.nop(2)
    e("v_permlane16_swap_b32 v12, v13")
    e("v_max_f32 v12, v12, v13")
    e("v_mov_b32 v13, v12")
    g.nop(2)
    e("v_permlane32_swap_b32 v12, v13")
    e("v_max_f32 v12, v12, v13")
    e("s_lshl_b32 s3, s7, 2")
    e(f"s_add_u32 s3, s3, {L_MX}")
    e("v_mov_b32 v6, s3")
    e("v_and_b32 v7, 16, v0")
    e(f"v_add_u32 v7, {L_MX}, v7")
    e("s_mov_b32 s64, 0x3e0293ee")
    e("v_mul_f32 v14, s64, v12")
    e("ds_write_b32 v6, v14")
    for k in range(32, 64):
        e(f"v_fma_f32 v{k}, v{k}, s64, -v14")
    for k in range(32, 64):
        e(f"v_exp_f32 v{k}, v{k}")
    e("v_add_f32 v12, v32, v33")
    e("v_add_f32 v13, v34, v35")
    for k in range(36, 64, 2):
        e(f"v_add_f32 v12, v12, v{k}")
        e(f"v_add_f32 v13, v13, v{k+1}")
    e("v_add_f32 v12, v12, v13")
    for k in range(32, 64):
        e(f"v_cvt_pk_bf16_f32 v{k}, v{k}, v{k}")
    e("v_mov_b32 v13, v12")
    g.nop(2)
    e("v_permlane16_swap_b32 v12, v13")
    e("v_add_f32 v12, v12, v13")
    e("v_mov_b32 v13, v12")
    g.nop(2)
    e("v_permlane32_swap_b32 v12, v13")
    e("v_add_f32 v12, v12, v13")
    e(f"ds_write_b32 v6, v12 offset:{L_LS-L_MX}")
    e("v_and_b32 v16, 15, v0")
    e("v_lshrrev_b32 v17, 4, v0")
    e("v_lshrrev_b32 v18, 2, v16")
    e("v_lshlrev_b32 v18, 10, v18")
    e("v_lshl_add_u32 v18, v17, 8, v18")
    e("v_and_b32 v19, 3, v0")
    e("v_lshl_add_u32 v18, v19, 3, v18")
    e("v_add_u32 v1, s63, v18")
    e("s_mul_i32 s3, s7, 288")
    e(f"s_add_u32 s3, s3, {L_OB}")
    e("v_lshlrev_b32 v18, 6, v17")
    e("v_lshl_add_u32 v18, v16, 3, v18")
    e("v_add_u32 v2, s3, v18")
    e("v_and_b32 v18, 7, v0")
    e("v_mul_u32_u24 v18, 288, v18")
    e("v_lshl_add_u32 v18, v17, 4, v18")
    e(f"v_add_u32 v4, {L_OB}, v18")
    g.stamp(5)

    if o["vprio"] >= 0: e(f"s_setprio {o['vprio']}")
    for i in range(8):
        for rr in range(4):
            for w in range(4):
                e(f"v_and_b32 v{16+4*rr+w}, v{32+4*i+rr}, v{8+w}")
        waitc(f"v{i}")
        for rr in range(4):
            r = 128 + 16 * i + 4 * rr
            cc = "0" if (i == 0 and rr == 0) else "v[12:15]"
            e(f"v_mfma_f32_16x16x32_bf16 v[12:15], v[{r}:{r+3}], v[{16+4*rr}:{19+4*rr}], {cc}")
        if i == o["trgrp"]:
            waitc("wo")
            n = 0
            for blk in range(4):
                for kk in range(4):
                    for hf in range(2):
                        r = 64 + blk * 16 + kk * 4 + hf * 2
                        e(f"ds_read_b64_tr_b16 v[{r}:{r+1}], v1 offset:{kk*4096+hf*128+blk*32}")
                        n += 1
                        if n % 8 == 0:
                            e("s_waitcnt lgkmcnt(4)")
        if i == o["cntgrp"]:
            e("s_cmp_lg_u32 s48, 0")
            e("s_cbranch_scc1 L_cntok")
            e("s_mov_b32 s42, 0x40000")
            g.lab("L_cpoll")
            e("v_cmp_le_u32 vcc, 0x80, v3")
            e("s_cbranch_vccnz L_cntok")
            e("buffer_load_dword v3, off, s[32:35], s57 sc0 sc1")
            e("s_sub_u32 s42, s42, 1")
            e("s_cmp_lg_u32 s42, 0")
            e("s_waitcnt vmcnt(0)")
            e("s_cbranch_scc1 L_cpoll")
            g.lab("L_cntok")
    g.stamp(6)
    g.nop(8)
    e("v_cvt_pk_bf16_f32 v12, v12, v13")
    e("v_cvt_pk_bf16_f32 v13, v14, v15")
    e("s_mov_b64 exec, s[66:67]")
    e("ds_write_b64 v2, v[12:13]")
    e("s_mov_b64 exec, -1")
    e("s_waitcnt lgkmcnt(0)")
    e("s_barrier")
    g.stamp(7)
    e(f"ds_read_b128 v[48:51], v7")
    e(f"ds_read_b128 v[52:55], v7 offset:{L_LS-L_MX}")
    for kk in range(4):
        e(f"ds_read_b128 v[{16+4*kk}:{19+4*kk}], v4 offset:{kk*64}")
    for kk in range(4):
        e(f"s_waitcnt lgkmcnt({3-kk})")
        for blk in range(4):
            r = 64 + blk * 16 + kk * 4
            cc = "0" if kk == 0 else f"v[{32+4*blk}:{35+4*blk}]"
            e(f"v_mfma_f32_16x16x32_bf16 v[{32+4*blk}:{35+4*blk}], v[{16+4*kk}:{19+4*kk}], v[{r}:{r+3}], {cc}")
        if kk == 0:
            e("v_max3_f32 v56, v48, v49, v50")
            e("v_max_f32 v56, v56, v51")
            e("v_mov_b32 v57, v56")
        if kk == 1:
            e("v_permlane16_swap_b32 v56, v57")
            e("v_max_f32 v56, v56, v57")
            for k in range(4):
                e(f"v_sub_f32 v{48+k}, v{48+k}, v56")
        if kk == 2:
            for k in range(4):
                e(f"v_exp_f32 v{48+k}, v{48+k}")
    e("v_mul_f32 v57, v48, v52")
    for k in range(1, 4):
        e(f"v_fma_f32 v57, v{48+k}, v{52+k}, v57")
    e("v_mov_b32 v58, v57")
    for blk in range(4):
        r = 32 + 4 * blk
        e(f"v_mul_f32 v{r}, v{r}, v48")
        if blk == 1:
            e("v_permlane16_swap_b32 v57, v58")
            e("v_add_f32 v57, v57, v58")
    for k in range(1, 4):
        for blk in range(4):
            r = 32 + 4 * blk
            e(f"v_fma_f32 v{r}, v{r+k}, v{48+k}, v{r}")
    e("v_min_u32 v56, -2, v56")
    e("v_min_u32 v57, -2, v57")
    e("v_permlane16_swap_b32 v32, v36")
    e("v_permlane16_swap_b32 v40, v44")
    e("v_add_f32 v32, v32, v36")
    e("v_add_f32 v40, v40, v44")
    g.nop(2)
    e("v_permlane32_swap_b32 v32, v40")
    e("v_min_u32 v32, -2, v32")
    g.nop(2)
    for k in range(1, 4):
        e(f"v_mov_b32_dpp v{32+k}, v32 quad_perm:[{k},{k},{k},{k}] row_mask:0xf bank_mask:0xf")
    e("s_mov_b64 exec, s[60:61]")
    g.vmem("buffer_store_dwordx4 v[32:35], v5, s[36:39], s58 offen sc0 sc1", "y")
    e("s_cmp_lg_u32 s7, 0")
    e("s_cbranch_scc1 L_noml")
    e("s_mov_b64 exec, 1")
    e("buffer_store_dwordx2 v[56:57], off, s[36:39], s59 sc0 sc1")
    g.lab("L_noml")
    e("s_mov_b64 exec, -1")
    g.stamp(8)
    e("s_cmp_lg_u32 s56, 0")
    e("s_cbranch_scc1 L_fin")

    e("s_lshl_b32 s40, s6, 18")
    e("s_lshl_b32 s3, s5, 14")
    e("s_add_u32 s40, s40, s3")
    e("s_lshl_b32 s3, s7, 11")
    e("s_add_u32 s40, s40, s3")
    e("s_lshl_b32 s41, s6, 10")
    e("s_lshl_b32 s3, s7, 7")
    e("s_add_u32 s41, s41, s3")
    e(f"s_add_u32 s41, s41, {WS_ML}")
    e("v_lshlrev_b32 v1, 4, v0")
    e("v_lshrrev_b32 v3, 3, v0")
    e("v_lshlrev_b32 v3, 3, v3")
    e("s_mov_b32 s42, 0x40000")
    g.lab("L_poll")
    e("buffer_load_dwordx4 v[16:19], v1, s[36:39], s40 offen sc0 sc1")
    e("buffer_load_dwordx4 v[20:23], v1, s[36:39], s40 offen offset:1024 sc0 sc1")
    e("buffer_load_dwordx2 v[24:25], v3, s[36:39], s41 offen sc0 sc1")
    e("buffer_load_dwordx2 v[26:27], v3, s[36:39], s41 offen offset:64 sc0 sc1")
    e("s_sub_u32 s42, s42, 1")
    e("s_waitcnt vmcnt(0)")
    e("v_max3_u32 v28, v16, v17, v18")
    e("v_max3_u32 v29, v19, v20, v21")
    e("v_max3_u32 v28, v28, v22, v23")
    e("v_max3_u32 v29, v29, v24, v25")
    e("v_max3_u32 v28, v28, v26, v27")
    e("v_max_u32 v28, v28, v29")
    e("v_cmp_eq_u32 vcc, -1, v28")
    e("s_cbranch_vccz L_got")
    e("s_cmp_gt_i32 s42, 0")
    e("s_cbranch_scc1 L_poll")
    g.lab("L_got")
    g.stamp(9)
    e("v_max_f32_dpp v28, v24, v24 row_ror:8 row_mask:0xf bank_mask:0xf")
    e("v_max_f32_dpp v30, v26, v26 row_ror:8 row_mask:0xf bank_mask:0xf")
    e("v_mov_b32 v29, v28")
    e("v_mov_b32 v31, v30")
    g.nop(1)
    e("v_permlane16_swap_b32 v28, v29")
    e("v_permlane16_swap_b32 v30, v31")
    e("v_max_f32 v28, v28, v29")
    e("v_max_f32 v30, v30, v31")
    e("v_sub_f32 v24, v24, v28")
    e("v_sub_f32 v26, v26, v30")
    e("v_exp_f32 v24, v24")
    e("v_exp_f32 v26, v26")
    g.nop(1)
    e("v_mul_f32 v25, v24, v25")
    e("v_mul_f32 v27, v26, v27")
    g.nop(1)
    e("v_add_f32_dpp v28, v25, v25 row_ror:8 row_mask:0xf bank_mask:0xf")
    e("v_add_f32_dpp v30, v27, v27 row_ror:8 row_mask:0xf bank_mask:0xf")
    e("v_mov_b32 v29, v28")
    e("v_mov_b32 v31, v30")
    g.nop(1)
    e("v_permlane16_swap_b32 v28, v29")
    e("v_permlane16_swap_b32 v30, v31")
    e("v_add_f32 v28, v28, v29")
    e("v_add_f32 v30, v30, v31")
    e("v_rcp_f32 v28, v28")
    e("v_rcp_f32 v30, v30")
    g.nop(1)
    e("v_mul_f32 v24, v24, v28")
    e("v_mul_f32 v26, v26, v30")
    for k in range(4):
        e(f"v_mul_f32 v{16+k}, v{16+k}, v24")
    for k in range(4):
        e(f"v_fma_f32 v{16+k}, v{20+k}, v26, v{16+k}")
    e("v_and_b32 v28, 7, v0")
    e("v_lshrrev_b32 v29, 4, v0")
    for k in range(4):
        e(f"v_add_f32_dpp v{16+k}, v{16+k}, v{16+k} row_ror:8 row_mask:0xf bank_mask:0xf")
    e("v_lshl_add_u32 v28, v28, 2, v29")
    e("s_lshl_b32 s3, s7, 2")
    e(f"s_add_u32 s3, s3, {L_RD}")
    e("v_permlane16_swap_b32 v16, v17")
    e("v_permlane16_swap_b32 v18, v19")
    e("v_add_f32 v16, v16, v17")
    e("v_add_f32 v18, v18, v19")
    e("v_lshl_add_u32 v28, v28, 5, s3")
    g.nop(1)
    e("v_permlane32_swap_b32 v16, v18")
    e("v_add_f32 v16, v16, v18")
    e("ds_write_b32 v28, v16")
    e("s_waitcnt lgkmcnt(0)")
    e("s_barrier")
    e("s_cmp_lg_u32 s7, 0")
    e("s_cbranch_scc1 L_fin")
    e("v_and_b32 v1, 31, v0")
    e("v_lshlrev_b32 v2, 5, v1")
    e(f"v_add_u32 v2, {L_RD}, v2")
    e("ds_read_b128 v[16:19], v2")
    e("ds_read_b128 v[20:23], v2 offset:16")
    e("v_lshlrev_b32 v1, 1, v1")
    e("s_lshl_b32 s40, s6, 10")
    e("s_lshl_b32 s3, s5, 6")
    e("s_add_u32 s40, s40, s3")
    e("s_waitcnt lgkmcnt(0)")
    e("v_add_f32 v16, v16, v17")
    e("v_add_f32 v18, v18, v19")
    e("v_add_f32 v20, v20, v21")
    e("v_add_f32 v22, v22, v23")
    e("v_add_f32 v16, v16, v18")
    e("v_add_f32 v20, v20, v22")
    e("v_add_f32 v16, v16, v20")
    e("v_cvt_pk_bf16_f32 v16, v16, v16")
    e("buffer_store_short v16, v1, s[28:31], s40 offen")
    g.lab("L_fin")
    if o["amp"]:
        g.stamp(10)
        a, b = 70 + 2 * o["ampa"], 70 + 2 * o["ampb"]
        e("s_waitcnt lgkmcnt(0)")
        e(f"s_sub_u32 s3, s{b}, s{a}")
        e(f"s_mul_i32 s3, s3, {o['amp']}")
        e("s_min_u32 s3, s3, 100000")
        g.lab("L_amp")
        e("s_memrealtime s[94:95]")
        e("s_waitcnt lgkmcnt(0)")
        e("s_sub_u32 s94, s94, s90")
        e("s_cmp_lt_u32 s94, s3")
        e("s_cbranch_scc1 L_amp")
    elif o["diag"]:
        g.stamp(10)
        e("s_getreg_b32 s92, hwreg(HW_REG_XCC_ID)")
        e("s_getreg_b32 s93, hwreg(HW_REG_HW_ID)")
        e("s_waitcnt lgkmcnt(0)")
        e("s_lshl_b32 s3, s2, 3")
        e("s_add_u32 s3, s3, s7")
        e("s_lshl_b32 s3, s3, 7")
        e(f"s_add_u32 s3, s3, {WS_DIAG}")
        e("s_mov_b64 exec, 1")
        for k in range(12):
            e(f"v_mov_b32 v16, s{70+2*k}")
            e(f"v_mov_b32 v17, s{71+2*k}")
            e(f"buffer_store_dwordx2 v[16:17], off, s[36:39], s3 offset:{8*k}")
            e("s_waitcnt vmcnt(0)")
    g.lab("L_end")

    src = open(REF).read().split("\n")
    out = []
    i = 0
    while not src[i].startswith(NAME + "_kernel:"):
        ln = src[i]
        if ln.startswith("; @launch"):
            ln = f"; @launch grid=(256,1,1) block=(512,1,1) lds={L_END}"
        out.append(ln)
        i += 1
    out.append(src[i])
    out += g.l
    while not src[i].startswith("s_endpgm"):
        i += 1
    out += src[i:]
    return "\n".join(out)


if __name__ == "__main__":
    path = sys.argv[1]
    kw = {}
    for a in sys.argv[2:]:
        k, v = a.split("=")
        kw[k] = int(v) if v.lstrip("-").isdigit() else ("" if v == "_" else v.replace("+", " "))
    open(path, "w").write(gen(**kw))
```

```python
import sys

NAME = "concat_heads__gqa_block_cached__gqa_block_cached__decode"
REF = f"cdna_kernels/{NAME}.s.ref"

DEF = dict(
    knt="nt", vnt="nt", wqnt="", wont="",
    order="q0,c,q1,q2,q3,p0,k0,k1", post="k2,w0,k3,w1,k4,w2,k5,w3,k6,k7", grot=1, amp=0, ampa=0, ampb=10, prio0=3, vprio=-1, nobar=1,
    rot=1,
    diag=0,
    cntgrp=5,
    trgrp=-1, kx="",
    wostart=0,
    wopg=4,
)

L_WO = 0
L_QP = 131072
L_QB = 135168
L_MX = 137216
L_LS = 137248
L_OB = 137344
L_RD = 139648
L_END = 140672
WS_ML = 524288
WS_DIAG = 1 << 20


class G:
    def __init__(self, o):
        self.o = o
        self.l = []
        self.vm = []

    def e(self, s):
        self.l.append("    " + s)

    def lab(self, s):
        self.l.append(s + ":")

    def c(self, s):
        self.l.append("    ; " + s)

    def vmem(self, s, tag):
        self.e(s)
        self.vm.append(tag)

    def wait(self, tag, extra=""):
        idx = max(i for i, t in enumerate(self.vm) if t == tag)
        n = sum(1 for t in self.vm[idx+1:] if t != "?")
        assert len(self.vm) - 1 - idx <= 63, (tag, n)
        self.e(f"s_waitcnt vmcnt({n}) {extra}".rstrip())

    def nop(self, n):
        self.e(f"s_nop {n-1}")

    def stamp(self, k):
        if self.o["diag"]:
            self.e(f"s_memrealtime s[{70+2*k}:{71+2*k}]")


def gen(**kw):
    o = dict(DEF)
    o.update(kw)
    g = G(o)
    e = g.e
    KNT, VNT, WQNT, WONT = o["knt"], o["vnt"], o["wqnt"], o["wont"]

    g.stamp(0)
    e("s_cmp_ge_u32 s2, 0x100")
    e("s_cbranch_scc1 L_end")
    if o["prio0"] >= 0: e(f"s_setprio {o['prio0']}")
    e("s_bfe_u32 s6, s2, 0x10005")
    e("s_mul_i32 s3, s6, 40")
    e("s_load_dwordx2 s[8:9], s[0:1], s3")
    e("s_add_u32 s4, s3, 24")
    e("s_load_dwordx2 s[20:21], s[0:1], s4")
    e("s_add_u32 s4, s3, 8")
    e("s_load_dwordx2 s[12:13], s[0:1], s4")
    e("s_add_u32 s4, s3, 16")
    e("s_load_dwordx2 s[16:17], s[0:1], s4")
    e("s_add_u32 s4, s3, 32")
    e("s_load_dwordx2 s[24:25], s[0:1], s4")
    e("s_load_dwordx2 s[28:29], s[0:1], 80")
    e("s_load_dwordx2 s[32:33], s[0:1], 88")
    e("s_load_dwordx2 s[36:37], s[0:1], 96")
    e("v_lshrrev_b32 v6, 6, v0")
    e("s_and_b32 s5, s2, 31")
    e("s_lshr_b32 s4, s2, 6")
    e("v_readfirstlane_b32 s7, v6")
    e("v_and_b32 v0, 63, v0")
    for r, sz in ((10, 1024), (14, 33554432), (18, 33554432), (22, 4194304), (26, 4194304),
                  (30, 2048), (34, 256), (38, 4194304)):
        e(f"s_mov_b32 s{r}, {sz}")
        e(f"s_mov_b32 s{r+1}, 0x20000")
    e("v_and_b32 v6, 15, v0")
    e("v_lshrrev_b32 v7, 4, v0")
    e("v_lshlrev_b32 v2, 10, v7")
    e("v_lshl_add_u32 v2, v6, 4, v2")
    e("v_lshlrev_b32 v3, 17, v7")
    e("v_lshl_add_u32 v3, v6, 4, v3")
    e("v_lshlrev_b32 v5, 5, v7")
    e("s_lshl_b32 s40, s5, 20")
    e("s_lshl_b32 s3, s4, 18")
    e("s_add_u32 s40, s40, s3")
    e("s_lshl_b32 s3, s7, 15")
    e("s_add_u32 s40, s40, s3")
    e("s_lshl_b32 s41, s7, 19")
    e("s_lshl_b32 s3, s5, 8")
    e("s_add_u32 s41, s41, s3")
    e("s_lshl_b32 s42, s7, 7")
    if o["grot"] == 1:
        e("s_add_u32 s43, s7, s2")
        e("s_lshr_b32 s3, s2, 3")
        e("s_add_u32 s43, s43, s3")
    elif o["grot"] == 2:
        e("s_lshl_b32 s3, s2, 3")
        e("s_add_u32 s3, s3, s7")
        e("s_mul_i32 s43, s3, 0x9E3779B1")
        e("s_lshr_b32 s43, s43, 24")
    else:
        e("s_mov_b32 s43, 0")
    for i in range(8):
        e(f"s_add_u32 s3, s43, {i}")
        e("s_and_b32 s3, s3, 7")
        e("s_lshl_b32 s3, s3, 12")
        e(f"s_add_u32 s{94+i}, s40, s3")
    for q in range(4):
        if o["rot"]:
            e(f"s_add_u32 s3, s4, {q}")
            e(f"s_and_b32 s{44+q}, s3, 3")
        else:
            e(f"s_mov_b32 s{44+q}, {q}")
    for q in range(4):
        e(f"s_lshl_b32 s3, s{44+q}, 3")
        e(f"s_add_u32 s{48+q}, s42, s3")
        e(f"s_lshl_b32 s3, s{44+q}, 15")
        e(f"s_add_u32 s{52+q}, s41, s3")
    e("s_waitcnt lgkmcnt(0)")
    g.stamp(1)

    def ld_x():
        for q in range(4):
            g.vmem(f"buffer_load_dwordx2 v[{32+2*q}:{33+2*q}], v5, s[8:11], s{48+q} offen", "x")

    def ld_wq(q):
        for u in range(4):
            t = 4 * q + u
            if u:
                e(f"s_add_u32 s{52+q}, s{52+q}, 0x2000")
            g.vmem(f"buffer_load_dwordx4 v[{64+4*t}:{67+4*t}], v3, s[20:23], s{52+q} offen {WQNT}", f"wq{t}")

    def ld_k(i):
        for rr in range(4):
            r = 128 + 16 * i + 4 * rr
            g.vmem(f"buffer_load_dwordx4 v[{r}:{r+3}], v2, s[12:15], s{94+i} offen offset:{rr*256} {KNT}", f"k{i}")

    def clears():
        e("s_mov_b64 exec, s[60:61]")
        g.vmem("buffer_store_dwordx4 v[12:15], v62, s[36:39], s58 offen sc0 sc1", "clr")
        e("s_mov_b64 exec, -1")
        e("s_cmp_lg_u32 s7, 0")
        e("s_cbranch_scc1 L_noclr")
        e("s_mov_b64 exec, 1")
        e("buffer_store_dwordx2 v[12:13], off, s[36:39], s59 sc0 sc1")
        e("s_mov_b64 exec, -1")
        g.lab("L_noclr")
        g.vm.append("?")

    def pre_clears():
        e("s_lshl_b32 s56, s5, 2")
        e("s_add_u32 s56, s56, s4")
        e("s_lshl_b32 s58, s6, 18")
        e("s_lshl_b32 s3, s7, 15")
        e("s_add_u32 s58, s58, s3")
        e("s_lshl_b32 s3, s56, 7")
        e("s_add_u32 s58, s58, s3")
        e("s_lshl_b32 s59, s6, 7")
        e("s_add_u32 s59, s59, s56")
        e("s_lshl_b32 s59, s59, 3")
        e(f"s_add_u32 s59, s59, {WS_ML}")
        e("s_mov_b32 s60, 0x11111111")
        e("s_mov_b32 s61, 0x11111111")
        e("v_lshrrev_b32 v63, 5, v0")
        e("v_lshlrev_b32 v63, 14, v63")
        e("v_and_b32 v62, 31, v0")
        e("v_lshl_add_u32 v62, v62, 2, v63")
        for r in range(12, 16):
            e(f"v_mov_b32 v{r}, -1")

    order = o["order"]
    ld_x()
    pre_clears()
    for tok in order.split(","):
        if tok[0] == "q": ld_wq(int(tok[1]))
        elif tok[0] == "k": ld_k(int(tok[1]))
        elif tok[0] == "c": clears()
        elif tok[0] == "p": e(f"s_setprio {tok[1]}")
    assert g.vm.index("clr") < g.vm.index("wq15")
    waitb = waitc = g.wait

    g.stamp(2)
    e("v_and_b32 v16, 1, v6")
    e("v_lshlrev_b32 v16, 4, v16")
    e("s_mov_b32 s3, 0xffff")
    e("v_lshlrev_b32 v16, v16, s3")
    e("v_lshrrev_b32 v17, 1, v6")
    for w in range(4):
        e(f"v_cmp_eq_u32 vcc, {w}, v17")
        g.nop(2)
        e(f"v_cndmask_b32 v{8+w}, 0, v16, vcc")
    e("v_lshrrev_b32 v16, 3, v0")
    e("v_and_b32 v17, 7, v0")
    e("v_lshlrev_b32 v4, 10, v16")
    e("v_lshl_add_u32 v4, v17, 4, v4")
    e("s_lshl_b32 s62, s5, 17")
    e("s_lshl_b32 s3, s7, 7")
    e("s_add_u32 s62, s62, s3")
    e("s_lshl_b32 s63, s7, 14")
    e("s_mov_b32 s64, 0x01000100")
    e("s_mov_b32 s65, 0x03020302")
    e("s_lshl_b32 s3, s7, 9")
    e(f"s_add_u32 s3, s3, {L_QP}")
    e("v_lshlrev_b32 v60, 7, v7")
    e("v_lshl_add_u32 v60, v6, 2, v60")
    e("v_add_u32 v60, s3, v60")
    e(f"v_lshlrev_b32 v61, 3, v0")
    e(f"v_add_u32 v61, {L_QP}, v61")
    e("s_lshl_b32 s3, s7, 8")
    e(f"s_add_u32 s3, s3, {L_QB}")
    e("v_lshl_add_u32 v59, v0, 2, s3")
    e("v_lshl_add_u32 v58, v6, 4, s3")
    e("s_mov_b32 s66, 0x00ff00ff")
    e("s_mov_b32 s67, 0x00ff00ff")
    waitb("x")
    e("v_mov_b32 v5, v62")
    for t in range(16):
        e(f"v_perm_b32 v{40+t}, v{32+(t>>1)}, v{32+(t>>1)}, s{64+(t&1)}")
    for t in range(16):
        b = 16 + 4 * (t & 3)
        for w in range(4):
            e(f"v_and_b32 v{b+w}, v{40+t}, v{8+w}")
        waitb(f"wq{t}")
        g.nop(1)
        cc = "0" if t == 0 else "v[12:15]"
        e(f"v_mfma_f32_16x16x32_bf16 v[12:15], v[{64+4*t}:{67+4*t}], v[{b}:{b+3}], {cc}")
    g.nop(8)
    e("s_mov_b64 exec, s[66:67]")
    for r in range(4):
        e(f"ds_write_b32 v60, v{12+r} offset:{r*32}")
    e("s_mov_b64 exec, -1")
    e("s_waitcnt lgkmcnt(0)")
    e("s_barrier")
    g.stamp(3)
    for w in range(8):
        e(f"ds_read_b64 v[{32+2*w}:{33+2*w}], v61 offset:{w*512}")
    e("s_lshl_b32 s57, s6, 7")
    e("s_cmp_lg_u32 s7, 0")
    e("s_cbranch_scc1 L_nocnt")
    e("v_mov_b32 v12, 1")
    e("s_mov_b64 exec, 1")
    e("buffer_atomic_add v12, off, s[32:35], s57 sc1")
    e("s_mov_b64 exec, -1")
    g.lab("L_nocnt")
    g.vm.append("?")
    e("s_lshr_b32 s3, s5, 4")
    e("s_or_b32 s56, s3, s4")
    e("s_or_b32 s48, s56, s7")
    for w in range(1, 8):
        e(f"s_waitcnt lgkmcnt({7-w})")
        e(f"v_add_f32 v32, v32, v{32+2*w}")
        e(f"v_add_f32 v33, v33, v{33+2*w}")
    e("v_cvt_pk_bf16_f32 v32, v32, v33")
    e("ds_write_b32 v59, v32")
    e("s_waitcnt lgkmcnt(0)")
    e("ds_read_b128 v[16:19], v58")
    for u in range(4):
        e(f"v_xor_b32 v{48+u}, {32*u}, v4")

    def ld_wo(q):
        for u in range(4):
            if u == 0:
                e(f"s_lshl_b32 s3, s{44+q}, 15")
                e("s_add_u32 s68, s62, s3")
                e(f"s_lshl_b32 s3, s{44+q}, 12")
                e("s_add_u32 s69, s63, s3")
            else:
                e("s_add_u32 s68, s68, 0x2000")
                e("s_add_u32 s69, s69, 0x400")
            e("s_mov_b32 m0, s69")
            g.nop(1)
            g.vmem(f"buffer_load_dwordx4 v{48+u}, s[24:27], s68 offen {WONT} lds", "wo")

    for tok in o["post"].split(","):
        if not tok: continue
        if tok[0] == "k": ld_k(int(tok[1]))
        elif tok[0] == "w": ld_wo(int(tok[1]))
        elif tok[0] == "p": e(f"s_setprio {tok[1]}")
    e("s_mov_b32 s64, 0xcccccccc")
    e("s_mov_b32 s65, 0xcccccccc")
    e("s_mov_b32 s50, 0xaaaaaaaa")
    e("s_mov_b32 s51, 0xaaaaaaaa")
    e("s_waitcnt lgkmcnt(0)")

    ALL = "row_mask:0xf bank_mask:0xf"
    kx = dict(t.split(":") for t in o["kx"].split(",") if t)
    for i in range(8):
        waitb(f"k{i}")
        for ee in range(4):
            for rr in range(4):
                cc = "0" if ee == 0 else f"v{12+rr}"
                e(f"v_dot2_f32_bf16 v{12+rr}, v{128+16*i+4*rr+ee}, v{16+ee}, {cc}")
        if i == o["cntgrp"]:
            e("s_cmp_lg_u32 s48, 0")
            e("s_cbranch_scc1 L_nocl")
            e("buffer_load_dword v3, off, s[32:35], s57 sc0 sc1")
            g.lab("L_nocl")
            g.vm.append("?")
        for rr in range(4):
            r = 128 + 16 * i + 4 * rr
            g.vmem(f"buffer_load_dwordx4 v[{r}:{r+3}], v2, s[16:19], s{94+i} offen offset:{rr*256} {VNT}", f"v{i}")
        if str(i) in kx:
            ld_wo(int(kx[str(i)]))
        e("v_add_f32_dpp v12, v12, v12 row_ror:8 row_mask:0xf bank_mask:0x3")
        e("v_add_f32_dpp v14, v14, v14 row_ror:8 row_mask:0xf bank_mask:0x3")
        e("v_add_f32_dpp v12, v13, v13 row_ror:8 row_mask:0xf bank_mask:0xc")
        e("v_add_f32_dpp v14, v15, v15 row_ror:8 row_mask:0xf bank_mask:0xc")
        g.nop(1)
        e(f"v_add_f32_dpp v{32+i}, v12, v12 row_half_mirror row_mask:0xf bank_mask:0x5")
        e(f"v_add_f32_dpp v{32+i}, v14, v14 row_half_mirror row_mask:0xf bank_mask:0xa")
        if i & 1:
            e(f"v_add_f32_dpp v{31+i}, v{31+i}, v{31+i} quad_perm:[2,3,0,1] {ALL}")
            g.nop(1)
            e(f"v_add_f32_dpp v{32+i}, v{32+i}, v{32+i} quad_perm:[2,3,0,1] {ALL}")
            e(f"v_cndmask_b32 v{40+(i>>1)}, v{31+i}, v{32+i}, s[64:65]")
        if i & 3 == 3:
            c0 = 40 + (i >> 1) - 1
            e(f"v_add_f32_dpp v{c0}, v{c0}, v{c0} quad_perm:[1,0,3,2] {ALL}")
            g.nop(1)
            e(f"v_add_f32_dpp v{c0+1}, v{c0+1}, v{c0+1} quad_perm:[1,0,3,2] {ALL}")
            e(f"v_cndmask_b32 v{44+(i>>2)}, v{c0}, v{c0+1}, s[50:51]")
    g.stamp(4)

    def rowred(op, r, t):
        for n in (8, 4, 2, 1):
            g.nop(2)
            e(f"{op}_dpp v{r}, v{r}, v{r} row_ror:{n} {ALL}")
        for sw in ("16", "32"):
            e(f"v_mov_b32 v{t}, v{r}")
            g.nop(2)
            e(f"v_permlane{sw}_swap_b32 v{r}, v{t}")
            e(f"{op} v{r}, v{r}, v{t}")

    e("v_max_f32 v12, v44, v45")
    rowred("v_max_f32", 12, 13)
    e("s_lshl_b32 s3, s7, 2")
    e(f"s_add_u32 s3, s3, {L_MX}")
    e("v_mov_b32 v6, s3")
    e("v_and_b32 v7, 16, v0")
    e(f"v_add_u32 v7, {L_MX}, v7")
    e("s_mov_b32 s64, 0x3e0293ee")
    e("v_mul_f32 v14, s64, v12")
    e("ds_write_b32 v6, v14")
    e("v_fma_f32 v44, v44, s64, -v14")
    e("v_fma_f32 v45, v45, s64, -v14")
    e("v_exp_f32 v44, v44")
    e("v_exp_f32 v45, v45")
    g.nop(1)
    e("v_add_f32 v12, v44, v45")
    e("v_cvt_pk_bf16_f32 v46, v44, v44")
    e("v_cvt_pk_bf16_f32 v47, v45, v45")
    rowred("v_add_f32", 12, 13)
    e(f"ds_write_b32 v6, v12 offset:{L_LS-L_MX}")
    e("v_and_b32 v16, 15, v0")
    e("v_lshrrev_b32 v17, 4, v0")
    e("v_lshrrev_b32 v19, 2, v16")
    e("v_lshlrev_b32 v18, 10, v19")
    e("v_lshl_add_u32 v18, v19, 5, v18")
    e("v_lshl_add_u32 v18, v17, 8, v18")
    e("v_and_b32 v19, 3, v0")
    e("v_lshl_add_u32 v18, v19, 3, v18")
    e("v_add_u32 v52, s63, v18")
    for blk in range(1, 4):
        e(f"v_xor_b32 v{52+blk}, {32*blk}, v52")
    e("s_mul_i32 s3, s7, 288")
    e(f"s_add_u32 s3, s3, {L_OB}")
    e("v_lshlrev_b32 v18, 6, v17")
    e("v_lshl_add_u32 v18, v16, 3, v18")
    e("v_add_u32 v2, s3, v18")
    e("v_and_b32 v18, 7, v0")
    e("v_mul_u32_u24 v18, 288, v18")
    e("v_lshl_add_u32 v18, v17, 4, v18")
    e(f"v_add_u32 v4, {L_OB}, v18")
    g.stamp(5)

    if o["vprio"] >= 0: e(f"s_setprio {o['vprio']}")
    def tr_reads():
        waitc("wo")
        n = 0
        for blk in range(4):
            for kk in range(4):
                for hf in range(2):
                    r = 64 + blk * 16 + kk * 4 + hf * 2
                    e(f"ds_read_b64_tr_b16 v[{r}:{r+1}], v{52+blk} offset:{kk*4096+hf*128}")
                    n += 1
                    if n % 8 == 0:
                        e("s_waitcnt lgkmcnt(4)")

    if o["trgrp"] < 0:
        tr_reads()
    for i in range(8):
        for rr in range(4):
            c = ((rr & 1) << 3) | ((rr >> 1) << 2) | ((i & 1) << 1) | ((i >> 1) & 1)
            for w in range(4):
                e(f"v_and_b32_dpp v{16+4*rr+w}, v{46+(i>>2)}, v{8+w} row_newbcast:{c} {ALL}")
        waitc(f"v{i}")
        for rr in range(4):
            r = 128 + 16 * i + 4 * rr
            cc = "0" if (i == 0 and rr == 0) else "v[12:15]"
            e(f"v_mfma_f32_16x16x32_bf16 v[12:15], v[{r}:{r+3}], v[{16+4*rr}:{19+4*rr}], {cc}")
        if i == o["trgrp"]:
            tr_reads()
        if i == o["cntgrp"]:
            e("s_cmp_lg_u32 s48, 0")
            e("s_cbranch_scc1 L_cntok")
            e("s_mov_b32 s42, 0x40000")
            g.lab("L_cpoll")
            e("v_cmp_le_u32 vcc, 0x80, v3")
            e("s_cbranch_vccnz L_cntok")
            e("buffer_load_dword v3, off, s[32:35], s57 sc0 sc1")
            e("s_sub_u32 s42, s42, 1")
            e("s_cmp_lg_u32 s42, 0")
            e("s_waitcnt vmcnt(0)")
            e("s_cbranch_scc1 L_cpoll")
            g.lab("L_cntok")
    g.stamp(6)
    g.nop(8)
    e("v_cvt_pk_bf16_f32 v12, v12, v13")
    e("v_cvt_pk_bf16_f32 v13, v14, v15")
    e("s_mov_b64 exec, s[66:67]")
    e("ds_write_b64 v2, v[12:13]")
    e("s_mov_b64 exec, -1")
    e("s_waitcnt lgkmcnt(0)")
    e("s_barrier")
    g.stamp(7)
    e(f"ds_read_b128 v[48:51], v7")
    e(f"ds_read_b128 v[52:55], v7 offset:{L_LS-L_MX}")
    for kk in range(4):
        e(f"ds_read_b128 v[{16+4*kk}:{19+4*kk}], v4 offset:{kk*64}")
    for kk in range(4):
        e(f"s_waitcnt lgkmcnt({3-kk})")
        for blk in range(4):
            r = 64 + blk * 16 + kk * 4
            cc = "0" if kk == 0 else f"v[{32+4*blk}:{35+4*blk}]"
            e(f"v_mfma_f32_16x16x32_bf16 v[{32+4*blk}:{35+4*blk}], v[{16+4*kk}:{19+4*kk}], v[{r}:{r+3}], {cc}")
        if kk == 0:
            e("v_max3_f32 v56, v48, v49, v50")
            e("v_max_f32 v56, v56, v51")
            e("v_mov_b32 v57, v56")
        if kk == 1:
            e("v_permlane16_swap_b32 v56, v57")
            e("v_max_f32 v56, v56, v57")
            for k in range(4):
                e(f"v_sub_f32 v{48+k}, v{48+k}, v56")
        if kk == 2:
            for k in range(4):
                e(f"v_exp_f32 v{48+k}, v{48+k}")
    e("v_mul_f32 v57, v48, v52")
    for k in range(1, 4):
        e(f"v_fma_f32 v57, v{48+k}, v{52+k}, v57")
    e("v_mov_b32 v58, v57")
    for blk in range(4):
        r = 32 + 4 * blk
        e(f"v_mul_f32 v{r}, v{r}, v48")
        if blk == 1:
            e("v_permlane16_swap_b32 v57, v58")
            e("v_add_f32 v57, v57, v58")
    for k in range(1, 4):
        for blk in range(4):
            r = 32 + 4 * blk
            e(f"v_fma_f32 v{r}, v{r+k}, v{48+k}, v{r}")
    e("v_min_u32 v56, -2, v56")
    e("v_min_u32 v57, -2, v57")
    e("v_permlane16_swap_b32 v32, v36")
    e("v_permlane16_swap_b32 v40, v44")
    e("v_add_f32 v32, v32, v36")
    e("v_add_f32 v40, v40, v44")
    g.nop(2)
    e("v_permlane32_swap_b32 v32, v40")
    e("v_min_u32 v32, -2, v32")
    g.nop(2)
    for k in range(1, 4):
        e(f"v_mov_b32_dpp v{32+k}, v32 quad_perm:[{k},{k},{k},{k}] row_mask:0xf bank_mask:0xf")
    e("s_mov_b64 exec, s[60:61]")
    g.vmem("buffer_store_dwordx4 v[32:35], v5, s[36:39], s58 offen sc0 sc1", "y")
    e("s_cmp_lg_u32 s7, 0")
    e("s_cbranch_scc1 L_noml")
    e("s_mov_b64 exec, 1")
    e("buffer_store_dwordx2 v[56:57], off, s[36:39], s59 sc0 sc1")
    g.lab("L_noml")
    e("s_mov_b64 exec, -1")
    g.stamp(8)
    e("s_cmp_lg_u32 s56, 0")
    e("s_cbranch_scc1 L_fin")

    e("s_lshl_b32 s40, s6, 18")
    e("s_lshl_b32 s3, s5, 14")
    e("s_add_u32 s40, s40, s3")
    e("s_lshl_b32 s3, s7, 11")
    e("s_add_u32 s40, s40, s3")
    e("s_lshl_b32 s41, s6, 10")
    e("s_lshl_b32 s3, s7, 7")
    e("s_add_u32 s41, s41, s3")
    e(f"s_add_u32 s41, s41, {WS_ML}")
    e("v_lshlrev_b32 v1, 4, v0")
    e("v_lshrrev_b32 v3, 3, v0")
    e("v_lshlrev_b32 v3, 3, v3")
    e("s_mov_b32 s42, 0x40000")
    g.lab("L_poll")
    e("buffer_load_dwordx4 v[16:19], v1, s[36:39], s40 offen sc0 sc1")
    e("buffer_load_dwordx4 v[20:23], v1, s[36:39], s40 offen offset:1024 sc0 sc1")
    e("buffer_load_dwordx2 v[24:25], v3, s[36:39], s41 offen sc0 sc1")
    e("buffer_load_dwordx2 v[26:27], v3, s[36:39], s41 offen offset:64 sc0 sc1")
    e("s_sub_u32 s42, s42, 1")
    e("s_waitcnt vmcnt(0)")
    e("v_max3_u32 v28, v16, v17, v18")
    e("v_max3_u32 v29, v19, v20, v21")
    e("v_max3_u32 v28, v28, v22, v23")
    e("v_max3_u32 v29, v29, v24, v25")
    e("v_max3_u32 v28, v28, v26, v27")
    e("v_max_u32 v28, v28, v29")
    e("v_cmp_eq_u32 vcc, -1, v28")
    e("s_cbranch_vccz L_got")
    e("s_cmp_gt_i32 s42, 0")
    e("s_cbranch_scc1 L_poll")
    g.lab("L_got")
    g.stamp(9)
    e("v_max_f32_dpp v28, v24, v24 row_ror:8 row_mask:0xf bank_mask:0xf")
    e("v_max_f32_dpp v30, v26, v26 row_ror:8 row_mask:0xf bank_mask:0xf")
    e("v_mov_b32 v29, v28")
    e("v_mov_b32 v31, v30")
    g.nop(1)
    e("v_permlane16_swap_b32 v28, v29")
    e("v_permlane16_swap_b32 v30, v31")
    e("v_max_f32 v28, v28, v29")
    e("v_max_f32 v30, v30, v31")
    e("v_sub_f32 v24, v24, v28")
    e("v_sub_f32 v26, v26, v30")
    e("v_exp_f32 v24, v24")
    e("v_exp_f32 v26, v26")
    g.nop(1)
    e("v_mul_f32 v25, v24, v25")
    e("v_mul_f32 v27, v26, v27")
    g.nop(1)
    e("v_add_f32_dpp v28, v25, v25 row_ror:8 row_mask:0xf bank_mask:0xf")
    e("v_add_f32_dpp v30, v27, v27 row_ror:8 row_mask:0xf bank_mask:0xf")
    e("v_mov_b32 v29, v28")
    e("v_mov_b32 v31, v30")
    g.nop(1)
    e("v_permlane16_swap_b32 v28, v29")
    e("v_permlane16_swap_b32 v30, v31")
    e("v_add_f32 v28, v28, v29")
    e("v_add_f32 v30, v30, v31")
    e("v_rcp_f32 v28, v28")
    e("v_rcp_f32 v30, v30")
    g.nop(1)
    e("v_mul_f32 v24, v24, v28")
    e("v_mul_f32 v26, v26, v30")
    for k in range(4):
        e(f"v_mul_f32 v{16+k}, v{16+k}, v24")
    for k in range(4):
        e(f"v_fma_f32 v{16+k}, v{20+k}, v26, v{16+k}")
    e("v_and_b32 v28, 7, v0")
    e("v_lshrrev_b32 v29, 4, v0")
    for k in range(4):
        e(f"v_add_f32_dpp v{16+k}, v{16+k}, v{16+k} row_ror:8 row_mask:0xf bank_mask:0xf")
    e("v_lshl_add_u32 v28, v28, 2, v29")
    e("s_lshl_b32 s3, s7, 2")
    e(f"s_add_u32 s3, s3, {L_RD}")
    e("v_permlane16_swap_b32 v16, v17")
    e("v_permlane16_swap_b32 v18, v19")
    e("v_add_f32 v16, v16, v17")
    e("v_add_f32 v18, v18, v19")
    e("v_lshl_add_u32 v28, v28, 5, s3")
    g.nop(1)
    e("v_permlane32_swap_b32 v16, v18")
    e("v_add_f32 v16, v16, v18")
    e("ds_write_b32 v28, v16")
    e("s_waitcnt lgkmcnt(0)")
    e("s_barrier")
    e("s_cmp_lg_u32 s7, 0")
    e("s_cbranch_scc1 L_fin")
    e("v_and_b32 v1, 31, v0")
    e("v_lshlrev_b32 v2, 5, v1")
    e(f"v_add_u32 v2, {L_RD}, v2")
    e("ds_read_b128 v[16:19], v2")
    e("ds_read_b128 v[20:23], v2 offset:16")
    e("v_lshlrev_b32 v1, 1, v1")
    e("s_lshl_b32 s40, s6, 10")
    e("s_lshl_b32 s3, s5, 6")
    e("s_add_u32 s40, s40, s3")
    e("s_waitcnt lgkmcnt(0)")
    e("v_add_f32 v16, v16, v17")
    e("v_add_f32 v18, v18, v19")
    e("v_add_f32 v20, v20, v21")
    e("v_add_f32 v22, v22, v23")
    e("v_add_f32 v16, v16, v18")
    e("v_add_f32 v20, v20, v22")
    e("v_add_f32 v16, v16, v20")
    e("v_cvt_pk_bf16_f32 v16, v16, v16")
    e("buffer_store_short v16, v1, s[28:31], s40 offen")
    g.lab("L_fin")
    if o["amp"]:
        g.stamp(10)
        a, b = 70 + 2 * o["ampa"], 70 + 2 * o["ampb"]
        e("s_waitcnt lgkmcnt(0)")
        e(f"s_sub_u32 s3, s{b}, s{a}")
        e(f"s_mul_i32 s3, s3, {o['amp']}")
        e("s_min_u32 s3, s3, 100000")
        g.lab("L_amp")
        e("s_memrealtime s[94:95]")
        e("s_waitcnt lgkmcnt(0)")
        e("s_sub_u32 s94, s94, s90")
        e("s_cmp_lt_u32 s94, s3")
        e("s_cbranch_scc1 L_amp")
    elif o["diag"]:
        g.stamp(10)
        e("s_getreg_b32 s92, hwreg(HW_REG_XCC_ID)")
        e("s_getreg_b32 s93, hwreg(HW_REG_HW_ID)")
        e("s_waitcnt lgkmcnt(0)")
        e("s_lshl_b32 s3, s2, 3")
        e("s_add_u32 s3, s3, s7")
        e("s_lshl_b32 s3, s3, 7")
        e(f"s_add_u32 s3, s3, {WS_DIAG}")
        e("s_mov_b64 exec, 1")
        for k in range(12):
            e(f"v_mov_b32 v16, s{70+2*k}")
            e(f"v_mov_b32 v17, s{71+2*k}")
            e(f"buffer_store_dwordx2 v[16:17], off, s[36:39], s3 offset:{8*k}")
            e("s_waitcnt vmcnt(0)")
    g.lab("L_end")

    src = open(REF).read().split("\n")
    out = []
    i = 0
    while not src[i].startswith(NAME + "_kernel:"):
        ln = src[i]
        if ln.startswith("; @launch"):
            ln = f"; @launch grid=(256,1,1) block=(512,1,1) lds={L_END}"
        out.append(ln)
        i += 1
    out.append(src[i])
    out += g.l
    while not src[i].startswith("s_endpgm"):
        i += 1
    out += src[i:]
    return "\n".join(out)


if __name__ == "__main__":
    path = sys.argv[1]
    kw = {}
    for a in sys.argv[2:]:
        k, v = a.split("=")
        kw[k] = int(v) if v.lstrip("-").isdigit() else ("" if v == "_" else v.replace("+", " "))
    open(path, "w").write(gen(**kw))
```

```python
import sys

NAME = "concat_heads__gqa_block_cached__gqa_block_cached__decode"
REF = f"cdna_kernels/{NAME}.s.ref"

DEF = dict(
    knt="nt", vnt="nt", wqnt="", wont="",
    order="q0,c,q1,q2,q3,p0,k0,k1", post="k2,w0,k3,w1,k4,w2,k5,w3,k6,k7", grot=1, amp=0, ampa=0, ampb=10, prio0=3, vprio=-1, nobar=1,
    rot=1,
    diag=0,
    cntgrp=5,
    trgrp=-1, kx="",
    win=0,
    win2=0, wr0=0, wr1=100,
    wow=1,
    woev=2, wost=0,
    sboost=0,
    hmap=0,
    abl="",
    wostart=0,
    wopg=4,
)

L_WO = 0
L_QP = 131072
L_QB = 135168
L_MX = 137216
L_LS = 137248
L_OB = 137344
L_RD = 139648
L_END = 140672
WS_ML = 524288
WS_DIAG = 1 << 20


class G:
    def __init__(self, o):
        self.o = o
        self.l = []
        self.vm = []

    def e(self, s):
        self.l.append("    " + s)

    def lab(self, s):
        self.l.append(s + ":")

    def c(self, s):
        self.l.append("    ; " + s)

    def vmem(self, s, tag):
        self.e(s)
        self.vm.append(tag)

    def wait(self, tag, extra=""):
        idx = max(i for i, t in enumerate(self.vm) if t == tag)
        n = sum(1 for t in self.vm[idx+1:] if t != "?")
        assert len(self.vm) - 1 - idx <= 63, (tag, n)
        self.e(f"s_waitcnt vmcnt({n}) {extra}".rstrip())

    def nop(self, n):
        self.e(f"s_nop {n-1}")

    def stamp(self, k, alt=False):
        if self.o["diag"] == 2 and (k in (0, 3, 8, 10)) == alt: return
        if self.o["diag"] == 1 and alt: return
        if self.o["diag"]:
            self.e(f"s_memrealtime s[{70+2*k}:{71+2*k}]")


def gen(**kw):
    o = dict(DEF)
    o.update(kw)
    g = G(o)
    e = g.e
    KNT, VNT, WQNT, WONT = o["knt"], o["vnt"], o["wqnt"], o["wont"]

    g.stamp(0)
    e("s_cmp_ge_u32 s2, 0x100")
    e("s_cbranch_scc1 L_end")
    if o["prio0"] >= 0: e(f"s_setprio {o['prio0']}")
    e("s_bfe_u32 s6, s2, 0x10005")
    e("s_mul_i32 s3, s6, 40")
    e("s_load_dwordx2 s[8:9], s[0:1], s3")
    e("s_add_u32 s4, s3, 24")
    e("s_load_dwordx2 s[20:21], s[0:1], s4")
    e("s_add_u32 s4, s3, 8")
    e("s_load_dwordx2 s[12:13], s[0:1], s4")
    e("s_add_u32 s4, s3, 16")
    e("s_load_dwordx2 s[16:17], s[0:1], s4")
    e("s_add_u32 s4, s3, 32")
    e("s_load_dwordx2 s[24:25], s[0:1], s4")
    e("s_load_dwordx2 s[28:29], s[0:1], 80")
    e("s_load_dwordx2 s[32:33], s[0:1], 88")
    e("s_load_dwordx2 s[36:37], s[0:1], 96")
    e("v_lshrrev_b32 v6, 6, v0")
    if o["hmap"] == 1:
        e("s_add_u32 s5, s2, s6")
        e("s_and_b32 s5, s5, 7")
        e("s_bfe_u32 s4, s2, 0x20003")
        e("s_lshl2_add_u32 s5, s5, s4")
    elif o["hmap"] == 2:
        e("s_and_b32 s5, s2, 7")
        e("s_bfe_u32 s4, s2, 0x20003")
        e("s_lshl2_add_u32 s5, s5, s4")
    else:
        e("s_and_b32 s5, s2, 31")
    e("s_lshr_b32 s4, s2, 6")
    e("v_readfirstlane_b32 s7, v6")
    e("v_and_b32 v0, 63, v0")
    for r, sz in ((10, 1024), (14, 33554432), (18, 33554432), (22, 4194304), (26, 4194304),
                  (30, 2048), (34, 256), (38, 4194304)):
        e(f"s_mov_b32 s{r}, {sz}")
        e(f"s_mov_b32 s{r+1}, 0x20000")
    e("v_and_b32 v6, 15, v0")
    e("v_lshrrev_b32 v7, 4, v0")
    e("v_lshlrev_b32 v2, 10, v7")
    e("v_lshl_add_u32 v2, v6, 4, v2")
    e("v_lshlrev_b32 v3, 17, v7")
    e("v_lshl_add_u32 v3, v6, 4, v3")
    e("v_lshlrev_b32 v5, 5, v7")
    e("s_lshl_b32 s40, s5, 20")
    e("s_lshl_b32 s3, s4, 18")
    e("s_add_u32 s40, s40, s3")
    e("s_lshl_b32 s3, s7, 15")
    e("s_add_u32 s40, s40, s3")
    e("s_lshl_b32 s41, s7, 19")
    e("s_lshl_b32 s3, s5, 8")
    e("s_add_u32 s41, s41, s3")
    e("s_lshl_b32 s42, s7, 7")
    if o["grot"] == 1:
        e("s_add_u32 s43, s7, s2")
        e("s_lshr_b32 s3, s2, 3")
        e("s_add_u32 s43, s43, s3")
    elif o["grot"] == 2:
        e("s_lshl_b32 s3, s2, 3")
        e("s_add_u32 s3, s3, s7")
        e("s_mul_i32 s43, s3, 0x9E3779B1")
        e("s_lshr_b32 s43, s43, 24")
    else:
        e("s_mov_b32 s43, 0")
    for i in range(8):
        e(f"s_add_u32 s3, s43, {i}")
        e("s_and_b32 s3, s3, 7")
        e("s_lshl_b32 s3, s3, 12")
        e(f"s_add_u32 s{94+i}, s40, s3")
    for q in range(4):
        if o["rot"]:
            e(f"s_add_u32 s3, s4, {q}")
            e(f"s_and_b32 s{44+q}, s3, 3")
        else:
            e(f"s_mov_b32 s{44+q}, {q}")
    for q in range(4):
        e(f"s_lshl_b32 s3, s{44+q}, 3")
        e(f"s_add_u32 s{48+q}, s42, s3")
        e(f"s_lshl_b32 s3, s{44+q}, 15")
        e(f"s_add_u32 s{52+q}, s41, s3")
    e("s_waitcnt lgkmcnt(0)")
    g.stamp(1)

    def ld_x():
        for q in range(4):
            g.vmem(f"buffer_load_dwordx2 v[{32+2*q}:{33+2*q}], v5, s[8:11], s{48+q} offen", "x")

    def ld_wq(q):
        for u in range(4):
            t = 4 * q + u
            if "Q" in o["abl"] or ("q" in o["abl"] and q > 0):
                g.vm.append(f"wq{t}"); g.e("buffer_load_dword v63, off, s[8:11], 0"); continue
            if u:
                e(f"s_add_u32 s{52+q}, s{52+q}, 0x2000")
            g.vmem(f"buffer_load_dwordx4 v[{64+4*t}:{67+4*t}], v3, s[20:23], s{52+q} offen {WQNT}", f"wq{t}")

    def ld_k(i):
        for rr in range(4):
            r = 128 + 16 * i + 4 * rr
            g.vmem(f"buffer_load_dwordx4 v[{r}:{r+3}], v2, s[12:15], s{94+i} offen offset:{rr*256} {KNT}", f"k{i}")

    def clears():
        e("s_mov_b64 exec, s[60:61]")
        g.vmem("buffer_store_dwordx4 v[12:15], v62, s[36:39], s58 offen sc0 sc1", "clr")
        e("s_mov_b64 exec, -1")
        e("s_cmp_lg_u32 s7, 0")
        e("s_cbranch_scc1 L_noclr")
        e("s_mov_b64 exec, 1")
        e("buffer_store_dwordx2 v[12:13], off, s[36:39], s59 sc0 sc1")
        e("s_mov_b64 exec, -1")
        g.lab("L_noclr")
        g.vm.append("?")

    def pre_clears():
        e("s_lshl_b32 s56, s5, 2")
        e("s_add_u32 s56, s56, s4")
        e("s_lshl_b32 s58, s6, 18")
        e("s_lshl_b32 s3, s7, 15")
        e("s_add_u32 s58, s58, s3")
        e("s_lshl_b32 s3, s56, 7")
        e("s_add_u32 s58, s58, s3")
        e("s_lshl_b32 s59, s6, 7")
        e("s_add_u32 s59, s59, s56")
        e("s_lshl_b32 s59, s59, 3")
        e(f"s_add_u32 s59, s59, {WS_ML}")
        e("s_mov_b32 s60, 0x11111111")
        e("s_mov_b32 s61, 0x11111111")
        e("v_lshrrev_b32 v63, 5, v0")
        e("v_lshlrev_b32 v63, 14, v63")
        e("v_and_b32 v62, 31, v0")
        e("v_lshl_add_u32 v62, v62, 2, v63")
        for r in range(12, 16):
            e(f"v_mov_b32 v{r}, -1")

    waitb = waitc = g.wait

    def q_setup():
        e("v_and_b32 v16, 1, v6")
        e("v_lshlrev_b32 v16, 4, v16")
        e("s_mov_b32 s3, 0xffff")
        e("v_lshlrev_b32 v16, v16, s3")
        e("v_lshrrev_b32 v17, 1, v6")
        for w in range(4):
            e(f"v_cmp_eq_u32 vcc, {w}, v17")
            g.nop(2)
            e(f"v_cndmask_b32 v{8+w}, 0, v16, vcc")
        e("v_lshrrev_b32 v16, 3, v0")
        e("v_and_b32 v17, 7, v0")
        e("v_lshlrev_b32 v4, 10, v16")
        e("v_lshl_add_u32 v4, v17, 4, v4")
        e("s_lshl_b32 s62, s5, 17")
        e("s_lshl_b32 s3, s7, 7")
        e("s_add_u32 s62, s62, s3")
        e("s_lshl_b32 s63, s7, 14")
        e("s_mov_b32 s64, 0x01000100")
        e("s_mov_b32 s65, 0x03020302")
        e("s_lshl_b32 s3, s7, 9")
        e(f"s_add_u32 s3, s3, {L_QP}")
        e("v_lshlrev_b32 v60, 7, v7")
        e("v_lshl_add_u32 v60, v6, 2, v60")
        e("v_add_u32 v60, s3, v60")
        e(f"v_lshlrev_b32 v61, 3, v0")
        e(f"v_add_u32 v61, {L_QP}, v61")
        e("s_lshl_b32 s3, s7, 8")
        e(f"s_add_u32 s3, s3, {L_QB}")
        e("v_lshl_add_u32 v59, v0, 2, s3")
        e("v_lshl_add_u32 v58, v6, 4, s3")
        e("s_mov_b32 s66, 0x00ff00ff")
        e("s_mov_b32 s67, 0x00ff00ff")

    def q_x():
        waitb("x")
        e("v_mov_b32 v5, v62")
        for t in range(16):
            e(f"v_perm_b32 v{40+t}, v{32+(t>>1)}, v{32+(t>>1)}, s{64+(t&1)}")

    def q_mfma(qq):
        for t in range(4 * qq, 4 * qq + 4):
            b = 16 + 4 * (t & 3)
            for w in range(4):
                e(f"v_and_b32 v{b+w}, v{40+t}, v{8+w}")
            waitb(f"wq{t}")
            g.nop(1)
            cc = "0" if t == 0 else "v[12:15]"
            e(f"v_mfma_f32_16x16x32_bf16 v[12:15], v[{64+4*t}:{67+4*t}], v[{b}:{b+3}], {cc}")

    def q_pub():
        g.nop(8)
        e("s_mov_b64 exec, s[66:67]")
        for r in range(4):
            e(f"ds_write_b32 v60, v{12+r} offset:{r*32}")
        e("s_mov_b64 exec, -1")

    def q_bar():
        e("s_waitcnt lgkmcnt(0)")
        e("s_barrier")
        g.stamp(3)

    toks = o["order"].split(",")
    if "s" not in toks: toks += ["s", "x", "m0", "m1", "m2", "m3"]
    if "P" not in toks: toks.insert(toks.index("m3") + 1, "P")
    if "B" not in toks: toks += ["B"]
    ld_x()
    pre_clears()
    lastld = max(i for i, t in enumerate(toks[:toks.index("m3")]) if t[0] in "qkc")
    after_bar = toks[toks.index("B") + 1:]
    for n, tok in enumerate(toks[:toks.index("B") + 1]):
        if tok[0] == "q": ld_wq(int(tok[1]))
        elif tok[0] == "k": ld_k(int(tok[1]))
        elif tok[0] == "c": clears()
        elif tok[0] == "p": e(f"s_setprio {tok[1]}")
        elif tok == "s": q_setup()
        elif tok == "x": q_x()
        elif tok[0] == "m": q_mfma(int(tok[1]))
        elif tok == "P": q_pub()
        elif tok == "B": q_bar()
        if n == lastld: g.stamp(2)
    assert g.vm.index("clr") < g.vm.index("wq15")
    for w in range(8):
        e(f"ds_read_b64 v[{32+2*w}:{33+2*w}], v61 offset:{w*512}")
    for tok in after_bar:
        if tok[0] == "k": ld_k(int(tok[1]))
        elif tok[0] == "p": e(f"s_setprio {tok[1]}")
    e("s_lshl_b32 s57, s6, 7")
    e("s_cmp_lg_u32 s7, 0")
    e("s_cbranch_scc1 L_nocnt")
    e("v_mov_b32 v12, 1")
    e("s_mov_b64 exec, 1")
    e("buffer_atomic_add v12, off, s[32:35], s57 sc1")
    e("s_mov_b64 exec, -1")
    g.lab("L_nocnt")
    g.vm.append("?")
    e("s_and_b32 s49, s2, 31")
    e("s_lshr_b32 s3, s49, 4")
    e("s_or_b32 s56, s3, s4")
    e("s_or_b32 s48, s56, s7")
    for w in range(1, 8):
        e(f"s_waitcnt lgkmcnt({7-w})")
        e(f"v_add_f32 v32, v32, v{32+2*w}")
        e(f"v_add_f32 v33, v33, v{33+2*w}")
    e("v_cvt_pk_bf16_f32 v32, v32, v33")
    e("ds_write_b32 v59, v32")
    e("s_waitcnt lgkmcnt(0)")
    e("ds_read_b128 v[16:19], v58")
    for u in range(4):
        e(f"v_xor_b32 v{48+u}, {32*u}, v4")

    def ld_wo1(q, u):
        if "W" in o["abl"] or ("w" in o["abl"] and q > 0):
            g.vm.append("wo"); g.e("buffer_load_dword v63, off, s[8:11], 0"); return
        if u == 0:
            e(f"s_lshl_b32 s3, s{44+q}, 15")
            e("s_add_u32 s68, s62, s3")
            e(f"s_lshl_b32 s3, s{44+q}, 12")
            e("s_add_u32 s69, s63, s3")
        else:
            e("s_add_u32 s68, s68, 0x2000")
            e("s_add_u32 s69, s69, 0x400")
        e("s_mov_b32 m0, s69")
        g.nop(1)
        g.vmem(f"buffer_load_dwordx4 v{48+u}, s[24:27], s68 offen {WONT} lds", "wo")

    def ld_wo(q):
        for u in range(4):
            ld_wo1(q, u)

    WIN = o["win"]
    for tok in o["post"].split(","):
        if not tok or WIN: continue
        if tok[0] == "k": ld_k(int(tok[1]))
        elif tok[0] == "w": ld_wo(int(tok[1]))
        elif tok[0] == "p": e(f"s_setprio {tok[1]}")
    e("s_mov_b32 s64, 0xcccccccc")
    e("s_mov_b32 s65, 0xcccccccc")
    e("s_mov_b32 s50, 0xaaaaaaaa")
    e("s_mov_b32 s51, 0xaaaaaaaa")
    e("s_waitcnt lgkmcnt(0)")

    ALL = "row_mask:0xf bank_mask:0xf"
    kx = dict(t.split(":") for t in o["kx"].split(",") if t)
    def ld_v1(i, rr):
        r = 128 + 16 * i + 4 * rr
        g.vmem(f"buffer_load_dwordx4 v[{r}:{r+3}], v2, s[16:19], s{94+i} offen offset:{rr*256} {VNT}", f"v{i}")

    def ld_k1(i, rr):
        r = 128 + 16 * i + 4 * rr
        g.vmem(f"buffer_load_dwordx4 v[{r}:{r+3}], v2, s[12:15], s{94+i} offen offset:{rr*256} {KNT}", f"k{i}")

    def kblock(i):
        if i & 1: g.stamp({1: 1, 3: 2, 5: 4, 7: 5}[i], True)
        for ee in range(4):
            for rr in range(4):
                cc = "0" if ee == 0 else f"v{12+rr}"
                e(f"v_dot2_f32_bf16 v{12+rr}, v{128+16*i+4*rr+ee}, v{16+ee}, {cc}")
        if i == o["cntgrp"]:
            e("s_cmp_lg_u32 s48, 0")
            e("s_cbranch_scc1 L_nocl")
            e("buffer_load_dword v3, off, s[32:35], s57 sc0 sc1")
            g.lab("L_nocl")
            g.vm.append("?")
        if WIN:
            g.nop(3)
        else:
            for rr in range(4):
                ld_v1(i, rr)
            if str(i) in kx:
                ld_wo(int(kx[str(i)]))
        e("v_add_f32_dpp v12, v12, v12 row_ror:8 row_mask:0xf bank_mask:0x3")
        e("v_add_f32_dpp v14, v14, v14 row_ror:8 row_mask:0xf bank_mask:0x3")
        e("v_add_f32_dpp v12, v13, v13 row_ror:8 row_mask:0xf bank_mask:0xc")
        e("v_add_f32_dpp v14, v15, v15 row_ror:8 row_mask:0xf bank_mask:0xc")
        g.nop(1)
        e(f"v_add_f32_dpp v{32+i}, v12, v12 row_half_mirror row_mask:0xf bank_mask:0x5")
        e(f"v_add_f32_dpp v{32+i}, v14, v14 row_half_mirror row_mask:0xf bank_mask:0xa")
        if i & 1:
            e(f"v_add_f32_dpp v{31+i}, v{31+i}, v{31+i} quad_perm:[2,3,0,1] {ALL}")
            g.nop(1)
            e(f"v_add_f32_dpp v{32+i}, v{32+i}, v{32+i} quad_perm:[2,3,0,1] {ALL}")
            e(f"v_cndmask_b32 v{40+(i>>1)}, v{31+i}, v{32+i}, s[64:65]")
        if i & 3 == 3:
            c0 = 40 + (i >> 1) - 1
            e(f"v_add_f32_dpp v{c0}, v{c0}, v{c0} quad_perm:[1,0,3,2] {ALL}")
            g.nop(1)
            e(f"v_add_f32_dpp v{c0+1}, v{c0+1}, v{c0+1} quad_perm:[1,0,3,2] {ALL}")
            e(f"v_cndmask_b32 v{44+(i>>2)}, v{c0}, v{c0+1}, s[50:51]")

    if not WIN:
        for i in range(8):
            waitb(f"k{i}")
            kblock(i)
    def rowred(op, r, t):
        for n in (8, 4, 2, 1):
            g.nop(2)
            e(f"{op}_dpp v{r}, v{r}, v{r} row_ror:{n} {ALL}")
        for sw in ("16", "32"):
            e(f"v_mov_b32 v{t}, v{r}")
            g.nop(2)
            e(f"v_permlane{sw}_swap_b32 v{r}, v{t}")
            e(f"{op} v{r}, v{r}, v{t}")

    def softmax():
        g.stamp(4)

        e("v_max_f32 v12, v44, v45")
        rowred("v_max_f32", 12, 13)
        e("s_lshl_b32 s3, s7, 2")
        e(f"s_add_u32 s3, s3, {L_MX}")
        e("v_mov_b32 v6, s3")
        e("v_and_b32 v7, 16, v0")
        e(f"v_add_u32 v7, {L_MX}, v7")
        e("s_mov_b32 s64, 0x3e0293ee")
        e("v_mul_f32 v14, s64, v12")
        e("ds_write_b32 v6, v14")
        e("v_fma_f32 v44, v44, s64, -v14")
        e("v_fma_f32 v45, v45, s64, -v14")
        e("v_exp_f32 v44, v44")
        e("v_exp_f32 v45, v45")
        g.nop(1)
        e("v_add_f32 v12, v44, v45")
        e("v_cvt_pk_bf16_f32 v46, v44, v44")
        e("v_cvt_pk_bf16_f32 v47, v45, v45")
        rowred("v_add_f32", 12, 13)
        e(f"ds_write_b32 v6, v12 offset:{L_LS-L_MX}")
        e("v_and_b32 v16, 15, v0")
        e("v_lshrrev_b32 v17, 4, v0")
        e("v_lshrrev_b32 v19, 2, v16")
        e("v_lshlrev_b32 v18, 10, v19")
        e("v_lshl_add_u32 v18, v19, 5, v18")
        e("v_lshl_add_u32 v18, v17, 8, v18")
        e("v_and_b32 v19, 3, v0")
        e("v_lshl_add_u32 v18, v19, 3, v18")
        e("v_add_u32 v52, s63, v18")
        for blk in range(1, 4):
            e(f"v_xor_b32 v{52+blk}, {32*blk}, v52")
        e("s_mul_i32 s3, s7, 288")
        e(f"s_add_u32 s3, s3, {L_OB}")
        e("v_lshlrev_b32 v18, 6, v17")
        e("v_lshl_add_u32 v18, v16, 3, v18")
        e("v_add_u32 v1, s3, v18")
        e("v_and_b32 v18, 7, v0")
        e("v_mul_u32_u24 v18, 288, v18")
        e("v_lshl_add_u32 v18, v17, 4, v18")
        e(f"v_add_u32 v56, {L_OB}, v18")
        g.stamp(5)

    if not WIN:
        softmax()

    if o["vprio"] >= 0: e(f"s_setprio {o['vprio']}")
    def tr_reads():
        n = 0
        for blk in range(4):
            for kk in range(4):
                for hf in range(2):
                    r = 64 + blk * 16 + kk * 4 + hf * 2
                    e(f"ds_read_b64_tr_b16 v[{r}:{r+1}], v{52+blk} offset:{kk*4096+hf*128}")
                    n += 1
                    if n % 8 == 0:
                        e("s_waitcnt lgkmcnt(4)")

    def pv_pre(i):
        for rr in range(4):
            c = ((rr & 1) << 3) | ((rr >> 1) << 2) | ((i & 1) << 1) | ((i >> 1) & 1)
            for w in range(4):
                e(f"v_and_b32_dpp v{16+4*rr+w}, v{46+(i>>2)}, v{8+w} row_newbcast:{c} {ALL}")

    def pv(i):
        if i in (1, 3, 5): g.stamp({1: 6, 3: 7, 5: 9}[i], True)
        for rr in range(4):
            r = 128 + 16 * i + 4 * rr
            cc = "0" if (i == 0 and rr == 0) else "v[12:15]"
            e(f"v_mfma_f32_16x16x32_bf16 v[12:15], v[{r}:{r+3}], v[{16+4*rr}:{19+4*rr}], {cc}")
        if i == o["trgrp"]:
            waitc("wo")
            tr_reads()
        if i == o["cntgrp"]:
            e("s_cmp_lg_u32 s48, 0")
            e("s_cbranch_scc1 L_cntok")
            e("s_mov_b32 s42, 0x40000")
            g.lab("L_cpoll")
            e("v_cmp_le_u32 vcc, 0x80, v3")
            e("s_cbranch_vccnz L_cntok")
            e("buffer_load_dword v3, off, s[32:35], s57 sc0 sc1")
            e("s_sub_u32 s42, s42, 1")
            e("s_cmp_lg_u32 s42, 0")
            e("s_waitcnt vmcnt(0)")
            e("s_cbranch_scc1 L_cpoll")
            g.lab("L_cntok")

    if not WIN:
        if o["trgrp"] < 0:
            waitc("wo")
            tr_reads()
        for i in range(8):
            pv_pre(i)
            waitc(f"v{i}")
            pv(i)
    else:
        base = [("k", i, rr) for i in range(8) if f"k{i}" not in g.vm for rr in range(4)]
        base += [("v", i, rr) for i in range(8) for rr in range(4)]
        stream = []
        wl = [("w", q, u) for q in range(4) for u in range(4)]
        for j, it in enumerate(base):
            stream.append(it)
            if j >= o["wost"] and (j - o["wost"]) % o["woev"] == o["woev"] - 1 and wl:
                stream.append(wl.pop(0))
        assert not wl
        wt = lambda t: o["wow"] if t == "wo" else 4
        st = dict(arr=g.vm.index("wq15"), k=0, v=0, sm=False, tr=False, pre=-1)
        last = lambda t: max(i for i, x in enumerate(g.vm) if x == t)
        full = lambda t, n: g.vm.count(t) == n and last(t) <= st["arr"]

        def blocks():
            while st["k"] < 8 and full(f"k{st['k']}", 4):
                kblock(st["k"]); st["k"] += 1
            if st["k"] == 8 and not st["sm"]:
                softmax(); st["sm"] = True
            if st["sm"] and not st["tr"] and full("wo", 16):
                tr_reads(); st["tr"] = True
            while st["sm"] and st["v"] < 8:
                if st["pre"] < st["v"]:
                    pv_pre(st["v"]); st["pre"] = st["v"]
                if not full(f"v{st['v']}", 4): break
                g.nop(1)
                pv(st["v"]); st["v"] += 1

        def need(idx):
            if idx > st["arr"]:
                n = sum(1 for t in g.vm[idx+1:] if t != "?")
                assert len(g.vm) - 1 - idx <= 63
                e(f"s_waitcnt vmcnt({n})")
                st["arr"] = idx

        for n, (t, i, rr) in enumerate(stream):
            w = wt("wo" if t == "w" else t)
            fr = min(1.0, max(0.0, (100.0 * n / (len(stream) - 1) - o["wr0"]) / (o["wr1"] - o["wr0"])))
            lim = (round(WIN + fr * (o["win2"] - WIN)) if o["win2"] else WIN) + (o["sboost"] if (t == "v" and not st["sm"]) else 0)
            idx = len(g.vm) - 1
            while idx > st["arr"]:
                x = g.vm[idx]
                if x != "?":
                    if w + wt(x) > lim: break
                    w += wt(x)
                idx -= 1
            need(idx)
            if t == "v" and st["k"] <= i:
                need(last(f"k{i}"))
                blocks()
            {"k": ld_k1, "v": ld_v1, "w": ld_wo1}[t](i, rr)
            blocks()
        while st["v"] < 8:
            if st["k"] < 8: need(last(f"k{st['k']}"))
            elif not st["tr"]: need(last("wo"))
            else: need(last(f"v{st['v']}"))
            blocks()
    g.stamp(6)
    g.nop(8)
    e("v_cvt_pk_bf16_f32 v12, v12, v13")
    e("v_cvt_pk_bf16_f32 v13, v14, v15")
    e("s_mov_b64 exec, s[66:67]")
    e("ds_write_b64 v1, v[12:13]")
    e("s_mov_b64 exec, -1")
    e("s_waitcnt lgkmcnt(0)")
    e("s_barrier")
    g.stamp(7)
    e(f"ds_read_b128 v[48:51], v7")
    e(f"ds_read_b128 v[52:55], v7 offset:{L_LS-L_MX}")
    for kk in range(4):
        e(f"ds_read_b128 v[{16+4*kk}:{19+4*kk}], v56 offset:{kk*64}")
    for kk in range(4):
        e(f"s_waitcnt lgkmcnt({3-kk})")
        for blk in range(4):
            r = 64 + blk * 16 + kk * 4
            cc = "0" if kk == 0 else f"v[{32+4*blk}:{35+4*blk}]"
            e(f"v_mfma_f32_16x16x32_bf16 v[{32+4*blk}:{35+4*blk}], v[{16+4*kk}:{19+4*kk}], v[{r}:{r+3}], {cc}")
        if kk == 0:
            e("v_max3_f32 v56, v48, v49, v50")
            e("v_max_f32 v56, v56, v51")
            e("v_mov_b32 v57, v56")
        if kk == 1:
            e("v_permlane16_swap_b32 v56, v57")
            e("v_max_f32 v56, v56, v57")
            for k in range(4):
                e(f"v_sub_f32 v{48+k}, v{48+k}, v56")
        if kk == 2:
            for k in range(4):
                e(f"v_exp_f32 v{48+k}, v{48+k}")
    e("v_mul_f32 v57, v48, v52")
    for k in range(1, 4):
        e(f"v_fma_f32 v57, v{48+k}, v{52+k}, v57")
    e("v_mov_b32 v58, v57")
    for blk in range(4):
        r = 32 + 4 * blk
        e(f"v_mul_f32 v{r}, v{r}, v48")
        if blk == 1:
            e("v_permlane16_swap_b32 v57, v58")
            e("v_add_f32 v57, v57, v58")
    for k in range(1, 4):
        for blk in range(4):
            r = 32 + 4 * blk
            e(f"v_fma_f32 v{r}, v{r+k}, v{48+k}, v{r}")
    e("v_min_u32 v56, -2, v56")
    e("v_min_u32 v57, -2, v57")
    e("v_permlane16_swap_b32 v32, v36")
    e("v_permlane16_swap_b32 v40, v44")
    e("v_add_f32 v32, v32, v36")
    e("v_add_f32 v40, v40, v44")
    g.nop(2)
    e("v_permlane32_swap_b32 v32, v40")
    e("v_min_u32 v32, -2, v32")
    g.nop(2)
    for k in range(1, 4):
        e(f"v_mov_b32_dpp v{32+k}, v32 quad_perm:[{k},{k},{k},{k}] row_mask:0xf bank_mask:0xf")
    e("s_mov_b64 exec, s[60:61]")
    g.vmem("buffer_store_dwordx4 v[32:35], v5, s[36:39], s58 offen sc0 sc1", "y")
    e("s_cmp_lg_u32 s7, 0")
    e("s_cbranch_scc1 L_noml")
    e("s_mov_b64 exec, 1")
    e("buffer_store_dwordx2 v[56:57], off, s[36:39], s59 sc0 sc1")
    g.lab("L_noml")
    e("s_mov_b64 exec, -1")
    g.stamp(8)
    e("s_cmp_lg_u32 s56, 0")
    e("s_cbranch_scc1 L_fin")

    e("s_lshl_b32 s40, s6, 18")
    e("s_lshl_b32 s3, s49, 14")
    e("s_add_u32 s40, s40, s3")
    e("s_lshl_b32 s3, s7, 11")
    e("s_add_u32 s40, s40, s3")
    e("s_lshl_b32 s41, s6, 10")
    e("s_lshl_b32 s3, s7, 7")
    e("s_add_u32 s41, s41, s3")
    e(f"s_add_u32 s41, s41, {WS_ML}")
    e("v_lshlrev_b32 v1, 4, v0")
    e("v_lshrrev_b32 v3, 3, v0")
    e("v_lshlrev_b32 v3, 3, v3")
    e("s_mov_b32 s42, 0x40000")
    g.lab("L_poll")
    e("buffer_load_dwordx4 v[16:19], v1, s[36:39], s40 offen sc0 sc1")
    e("buffer_load_dwordx4 v[20:23], v1, s[36:39], s40 offen offset:1024 sc0 sc1")
    e("buffer_load_dwordx2 v[24:25], v3, s[36:39], s41 offen sc0 sc1")
    e("buffer_load_dwordx2 v[26:27], v3, s[36:39], s41 offen offset:64 sc0 sc1")
    e("s_sub_u32 s42, s42, 1")
    e("s_waitcnt vmcnt(0)")
    e("v_max3_u32 v28, v16, v17, v18")
    e("v_max3_u32 v29, v19, v20, v21")
    e("v_max3_u32 v28, v28, v22, v23")
    e("v_max3_u32 v29, v29, v24, v25")
    e("v_max3_u32 v28, v28, v26, v27")
    e("v_max_u32 v28, v28, v29")
    e("v_cmp_eq_u32 vcc, -1, v28")
    e("s_cbranch_vccz L_got")
    e("s_cmp_gt_i32 s42, 0")
    e("s_cbranch_scc1 L_poll")
    g.lab("L_got")
    g.stamp(9)
    e("v_max_f32_dpp v28, v24, v24 row_ror:8 row_mask:0xf bank_mask:0xf")
    e("v_max_f32_dpp v30, v26, v26 row_ror:8 row_mask:0xf bank_mask:0xf")
    e("v_mov_b32 v29, v28")
    e("v_mov_b32 v31, v30")
    g.nop(1)
    e("v_permlane16_swap_b32 v28, v29")
    e("v_permlane16_swap_b32 v30, v31")
    e("v_max_f32 v28, v28, v29")
    e("v_max_f32 v30, v30, v31")
    e("v_sub_f32 v24, v24, v28")
    e("v_sub_f32 v26, v26, v30")
    e("v_exp_f32 v24, v24")
    e("v_exp_f32 v26, v26")
    g.nop(1)
    e("v_mul_f32 v25, v24, v25")
    e("v_mul_f32 v27, v26, v27")
    g.nop(1)
    e("v_add_f32_dpp v28, v25, v25 row_ror:8 row_mask:0xf bank_mask:0xf")
    e("v_add_f32_dpp v30, v27, v27 row_ror:8 row_mask:0xf bank_mask:0xf")
    e("v_mov_b32 v29, v28")
    e("v_mov_b32 v31, v30")
    g.nop(1)
    e("v_permlane16_swap_b32 v28, v29")
    e("v_permlane16_swap_b32 v30, v31")
    e("v_add_f32 v28, v28, v29")
    e("v_add_f32 v30, v30, v31")
    e("v_rcp_f32 v28, v28")
    e("v_rcp_f32 v30, v30")
    g.nop(1)
    e("v_mul_f32 v24, v24, v28")
    e("v_mul_f32 v26, v26, v30")
    for k in range(4):
        e(f"v_mul_f32 v{16+k}, v{16+k}, v24")
    for k in range(4):
        e(f"v_fma_f32 v{16+k}, v{20+k}, v26, v{16+k}")
    e("v_and_b32 v28, 7, v0")
    e("v_lshrrev_b32 v29, 4, v0")
    for k in range(4):
        e(f"v_add_f32_dpp v{16+k}, v{16+k}, v{16+k} row_ror:8 row_mask:0xf bank_mask:0xf")
    e("v_lshl_add_u32 v28, v28, 2, v29")
    e("s_lshl_b32 s3, s7, 2")
    e(f"s_add_u32 s3, s3, {L_RD}")
    e("v_permlane16_swap_b32 v16, v17")
    e("v_permlane16_swap_b32 v18, v19")
    e("v_add_f32 v16, v16, v17")
    e("v_add_f32 v18, v18, v19")
    e("v_lshl_add_u32 v28, v28, 5, s3")
    g.nop(1)
    e("v_permlane32_swap_b32 v16, v18")
    e("v_add_f32 v16, v16, v18")
    e("ds_write_b32 v28, v16")
    e("s_waitcnt lgkmcnt(0)")
    e("s_barrier")
    e("s_cmp_lg_u32 s7, 0")
    e("s_cbranch_scc1 L_fin")
    e("v_and_b32 v1, 31, v0")
    e("v_lshlrev_b32 v2, 5, v1")
    e(f"v_add_u32 v2, {L_RD}, v2")
    e("ds_read_b128 v[16:19], v2")
    e("ds_read_b128 v[20:23], v2 offset:16")
    e("v_lshlrev_b32 v1, 1, v1")
    e("s_lshl_b32 s40, s6, 10")
    e("s_lshl_b32 s3, s49, 6")
    e("s_add_u32 s40, s40, s3")
    e("s_waitcnt lgkmcnt(0)")
    e("v_add_f32 v16, v16, v17")
    e("v_add_f32 v18, v18, v19")
    e("v_add_f32 v20, v20, v21")
    e("v_add_f32 v22, v22, v23")
    e("v_add_f32 v16, v16, v18")
    e("v_add_f32 v20, v20, v22")
    e("v_add_f32 v16, v16, v20")
    e("v_cvt_pk_bf16_f32 v16, v16, v16")
    e("buffer_store_short v16, v1, s[28:31], s40 offen")
    g.lab("L_fin")
    if o["amp"]:
        g.stamp(10)
        a, b = 70 + 2 * o["ampa"], 70 + 2 * o["ampb"]
        e("s_waitcnt lgkmcnt(0)")
        e(f"s_sub_u32 s3, s{b}, s{a}")
        e(f"s_mul_i32 s3, s3, {o['amp']}")
        e("s_min_u32 s3, s3, 100000")
        g.lab("L_amp")
        e("s_memrealtime s[94:95]")
        e("s_waitcnt lgkmcnt(0)")
        e("s_sub_u32 s94, s94, s90")
        e("s_cmp_lt_u32 s94, s3")
        e("s_cbranch_scc1 L_amp")
    elif o["diag"]:
        g.stamp(10)
        e("s_getreg_b32 s92, hwreg(HW_REG_XCC_ID)")
        e("s_getreg_b32 s93, hwreg(HW_REG_HW_ID)")
        e("s_waitcnt lgkmcnt(0)")
        e("s_lshl_b32 s3, s2, 3")
        e("s_add_u32 s3, s3, s7")
        e("s_lshl_b32 s3, s3, 7")
        e(f"s_add_u32 s3, s3, {WS_DIAG}")
        e("s_mov_b64 exec, 1")
        for k in range(12):
            e(f"v_mov_b32 v16, s{70+2*k}")
            e(f"v_mov_b32 v17, s{71+2*k}")
            e(f"buffer_store_dwordx2 v[16:17], off, s[36:39], s3 offset:{8*k}")
            e("s_waitcnt vmcnt(0)")
    g.lab("L_end")

    src = open(REF).read().split("\n")
    out = []
    i = 0
    while not src[i].startswith(NAME + "_kernel:"):
        ln = src[i]
        if ln.startswith("; @launch"):
            ln = f"; @launch grid=(256,1,1) block=(512,1,1) lds={L_END}"
        out.append(ln)
        i += 1
    out.append(src[i])
    out += g.l
    while not src[i].startswith("s_endpgm"):
        i += 1
    out += src[i:]
    return "\n".join(out)


if __name__ == "__main__":
    path = sys.argv[1]
    kw = {}
    for a in sys.argv[2:]:
        k, v = a.split("=")
        kw[k] = int(v) if v.lstrip("-").isdigit() else ("" if v == "_" else v.replace("+", " "))
    open(path, "w").write(gen(**kw))
```
